```python
import torch

def _softmax(x, axis=-1):
    return torch.softmax(x, dim=axis)
def _gelu(x):
    return torch.nn.functional.gelu(x, approximate="tanh")
def _silu(x):
    return torch.nn.functional.silu(x)
def _sigmoid(x):
    return torch.sigmoid(x)
def _layernorm(x, axis=-1, eps=1e-5):
    m = x.mean(dim=axis, keepdim=True)
    v = x.var(dim=axis, keepdim=True, unbiased=False)
    return (x - m) / torch.sqrt(v + eps)
def _scatter_add(tgt, idx, src, axis=0):
    return tgt.clone().index_add_(axis, idx, src)
def _segment_sum(src, seg, n):
    out = torch.zeros((n,) + src.shape[1:], dtype=src.dtype)
    return out.index_add_(0, seg, src)
def _pad(x, pw):
    flat = tuple(v for pair in reversed(pw) for v in pair)
    return torch.nn.functional.pad(x, flat)

kernel_name = 'recurrent_scan__linear_kernel_hedgehog__dense_activation_relu__prompt'

def setup_inputs():

    _w = (lambda a: (lambda t: t.to(torch.bfloat16) if t.is_floating_point() else t)(torch.as_tensor(a)))
    def _A_setup():
        B, S, D, H = 1, 2048, 576, 32
        Dh = D // H
        return {
            "x": _w((lambda *s: torch.randn(*s, dtype=torch.bfloat16) * 0.05)(B, S, D)),
            "wqkv": _w((lambda *s: torch.randn(*s, dtype=torch.bfloat16) * 0.2)(D, 3 * D)),
            "w_phi": _w((lambda *s: torch.randn(*s, dtype=torch.bfloat16) * 0.2)(H, Dh, Dh) * (Dh ** -0.5)),
            "wo": _w((lambda *s: torch.randn(*s, dtype=torch.bfloat16) * 0.05)(D, D)),
        }
    _A_in = _A_setup()

    def _B_setup():
        B, S, D, Dff = 1, 2048, 576, 4608
        return {
            "x": _w((lambda *s: torch.randn(*s, dtype=torch.bfloat16) * 0.05)(B, S, D)),
            "w1": _w((lambda *s: torch.randn(*s, dtype=torch.bfloat16) * 0.05)(D, Dff)),
            "w2": _w((lambda *s: torch.randn(*s, dtype=torch.bfloat16) * 0.05)(Dff, D)),
        }
    _B_in = _B_setup()

    return {
        "A_x": _A_in["x"],
        "A_wqkv": _A_in["wqkv"],
        "A_w_phi": _A_in["w_phi"],
        "A_wo": _A_in["wo"],
        "B_x": _B_in["x"],
        "B_w1": _B_in["w1"],
        "B_w2": _B_in["w2"],
    }

def reference(A_x, A_wqkv, A_w_phi, A_wo, B_x, B_w1, B_w2):
    def _A_ref(x, wqkv, w_phi, wo):
        B, S, D = x.shape
        H = 32; Dh = D // H
        qkv = (lambda x, *d: x.permute(*d))((x @ wqkv).reshape(B, S, 3, H, Dh), 2, 0, 3, 1, 4)
        q, k, v = qkv[0], qkv[1], qkv[2]
        pq = torch.einsum("bhsd,hdf->bhsf", q, w_phi)
        pk = torch.einsum("bhsd,hdf->bhsf", k, w_phi)
        phi_q = torch.concatenate([_softmax(pq, axis=-1), _softmax(-pq, axis=-1)], axis=-1)
        phi_k = torch.concatenate([_softmax(pk, axis=-1), _softmax(-pk, axis=-1)], axis=-1)
        kv = torch.einsum("bhsf,bhsd->bhfd", phi_k, v)
        z  = torch.einsum("bhsf->bhf", phi_k)
        num = torch.einsum("bhqf,bhfd->bhqd", phi_q, kv)
        den = torch.einsum("bhqf,bhf->bhq", phi_q, z)[..., None] + 1e-6
        o = num / den
        return (lambda x, *d: x.permute(*d))(o, 0, 2, 1, 3).reshape(B, S, D) @ wo

    def _B_ref(x, w1, w2):
        h = torch.einsum("bsd,df->bsf", x, w1)
        zero = torch.zeros_like(h)
        h = torch.maximum(h, zero)
        return torch.einsum("bsf,fd->bsd", h, w2)

    x = A_x
    xn = _layernorm(x, axis=-1)
    s = _A_ref(xn, A_wqkv, A_w_phi, A_wo)
    g = _silu(_B_ref(xn, B_w1, B_w2))
    return x + s * g
```

```python
import re

REG_RE = re.compile(r"\b([vas])\[(\d+):(\d+)\]|\b([vas])(\d+)\b|\b(vcc|exec|m0|scc)\b")
TRANS = ("v_exp_f32", "v_log_f32", "v_rcp_f32", "v_rsq_f32", "v_sqrt_f32", "v_sin_f32", "v_cos_f32")


def regs_of(s):
    out = []
    for m in REG_RE.finditer(s):
        if m.group(1):
            out += [f"{m.group(1)}{i}" for i in range(int(m.group(2)), int(m.group(3)) + 1)]
        elif m.group(4):
            out.append(m.group(4) + m.group(5))
        else:
            out.append(m.group(6))
    return out


class I:
    __slots__ = ("text", "op", "kind", "rd", "wr", "deps", "m0", "blk", "srcc", "ab", "done", "note", "wide")

    def __init__(self, text, deps=None, m0=None, note=None):
        self.text = text
        self.deps = list(deps) if deps else []
        self.m0 = m0
        self.blk = None
        self.srcc = ()
        self.ab = ()
        self.done = False
        self.note = note
        self.wide = False
        t = text.strip()
        op = t.split()[0] if t else ""
        self.op = op
        rest = t[len(op):]
        ops = [x.strip() for x in rest.split(",")] if rest.strip() else []
        rd, wr = [], []
        if t.endswith(":") or op.startswith(".") or op.startswith(";") or op == "@begin" or op == "@end" or op == "@need":
            k = "label" if t.endswith(":") else "meta"
        elif op.startswith("v_mfma"):
            k = "mfma"
            wr = regs_of(ops[0]); self.ab = tuple(regs_of(ops[1]) + regs_of(ops[2])); self.srcc = tuple(regs_of(ops[3]))
            rd = list(self.ab) + list(self.srcc)
        elif op.startswith("v_"):
            k = "trans" if op.startswith(TRANS) else "valu"
            wr = regs_of(ops[0]); rd = regs_of(",".join(ops[1:]))
            if op.startswith(("v_fmac", "v_dot2c", "v_writelane")): rd += wr
            if op.startswith("v_permlane"):
                wr = regs_of(ops[0]) + regs_of(ops[1]); rd = list(wr)
            if op.startswith(("v_add_co", "v_sub_co", "v_addc_co")):
                wr = regs_of(ops[0]) + regs_of(ops[1]); rd = regs_of(",".join(ops[2:]))
        elif op.startswith("ds_read"):
            k = "ds_rd"; wr = regs_of(ops[0]); rd = regs_of(",".join(ops[1:]))
        elif op.startswith("ds_bpermute"):
            k = "ds_rd"; wr = regs_of(ops[0]); rd = regs_of(",".join(ops[1:]))
        elif op.startswith("ds_write"):
            k = "ds_wr"; rd = regs_of(rest)
        elif op.startswith(("buffer_load", "global_load")):
            if re.search(r"\blds\b", rest):
                k = "dma"; rd = regs_of(rest) + ["m0"]
            else:
                k = "vm_ld"; wr = regs_of(ops[0]); rd = regs_of(",".join(ops[1:]))
        elif op.startswith(("buffer_store", "global_store", "buffer_atomic")):
            k = "vm_st"; rd = regs_of(rest); self.wide = op.endswith(("x3", "x4"))
        elif op == "s_waitcnt": k = "wait"
        elif op == "s_barrier": k = "barrier"
        elif op == "s_nop": k = "nop"
        elif op.startswith(("s_cbranch", "s_branch")):
            k = "branch"
        elif op.startswith(("s_load", "s_buffer_load", "s_memtime", "s_memrealtime")):
            k = "smem"; wr = regs_of(ops[0]); rd = regs_of(",".join(ops[1:]))
        elif op.startswith(("s_cmp", "s_bitcmp")):
            k = "salu"; rd = regs_of(rest); wr = ["scc"]
        elif op in ("s_sleep", "s_endpgm", "s_setprio"):
            k = "salu"
        elif op.startswith("s_"):
            k = "salu"; wr = regs_of(ops[0]); rd = regs_of(",".join(ops[1:]))
            if "saveexec" in op: wr += ["exec"]; rd += ["exec"]
        else:
            raise ValueError("unknown op: " + text)
        self.kind = k
        self.rd = tuple(rd); self.wr = tuple(wr)

    def __repr__(self):
        return f"I({self.text})"


VM = ("vm_ld", "vm_st", "dma")
DS = ("ds_rd", "ds_wr")


def need(*toks):
    flat = []
    for t in toks:
        if isinstance(t, (list, tuple)): flat += list(t)
        else: flat.append(t)
    return I("@need", deps=flat)


class Prog:
    def __init__(self):
        self.L = []
        self.nblk = 0

    def add(self, x, **kw):
        if isinstance(x, str):
            for line in x.strip().split("\n"):
                line = line.strip()
                if line:
                    i = I(line, **kw); self.L.append(i)
            return self.L[-1]
        if isinstance(x, I):
            self.L.append(x); return x
        for y in x: self.add(y)
        return None

    def begin(self):
        self.L.append(I("@begin"))

    def end(self):
        self.L.append(I("@end"))


def mark_blocks(L):
    cur = None; n = 0
    for i in L:
        if i.op == "@begin":
            assert cur is None, "nested optional block"
            n += 1; cur = n; i.blk = cur
        elif i.op == "@end":
            i.blk = cur; cur = None
        else:
            i.blk = cur
    assert cur is None


def pass_m0(L):
    out = []; cur = None
    for i in L:
        if i.op in ("@begin", "@end") or i.kind == "label": cur = None
        if i.kind == "dma":
            assert i.m0 is not None, i.text
            if i.m0 != cur:
                sreg, c = i.m0
                assert c >= 0 or sreg is None
                w = I(f"s_add_u32 m0, {sreg}, {c}") if sreg else I(f"s_mov_b32 m0, {c}")
                w.blk = i.blk
                p = out[-1] if out else None
                if p is not None and p.kind in ("mfma", "valu", "ds_rd", "trans") and p.blk == i.blk and "scc" not in p.rd:
                    out.insert(len(out) - 1, w)
                else:
                    out.append(w)
                cur = i.m0
        out.append(i)
    return out


def pass_waits(L, verbose=False):
    out = []
    seq = {"vm": [], "ds": []}
    pend = {}
    smem = False
    snap = None
    cls_of = {}
    maxout = {"vm": 0, "ds": 0}

    def sure_after(cl, idx, blk):
        return sum(1 for o in seq[cl][idx + 1:] if o.blk is None or o.blk == blk)

    def apply(cl, n, blk):
        s = seq[cl]; cnt = 0
        for z in range(len(s) - 1, -1, -1):
            if cnt >= n: s[z].done = True
            if s[z].blk is None or s[z].blk == blk: cnt += 1

    for i in L:
        if i.op == "@begin":
            snap = {id(o): o.done for c in seq for o in seq[c]}
        elif i.op == "@end":
            for c in seq:
                for o in seq[c]:
                    if id(o) in snap: o.done = snap[id(o)]
            snap = None
        needs = list(i.deps)
        if i.kind not in ("meta", "label"):
            for r in set(i.rd) | set(i.wr):
                p = pend.get(r)
                if p is not None:
                    if p.kind == "smem":
                        if not p.done: raise RuntimeError("unwaited smem reg " + r + " in " + i.text)
                    else: needs.append(p)
        req = {}
        for p in needs:
            if p.done: continue
            cl = cls_of.get(id(p))
            assert cl is not None, f"dependency not yet issued: {p.text} needed by {i.text}"
            idx = seq[cl].index(p)
            n = sure_after(cl, idx, i.blk)
            req[cl] = min(req.get(cl, 999), n)
        if req:
            parts = []
            if "vm" in req:
                n = min(req["vm"], 62); parts.append(f"vmcnt({n})"); apply("vm", n, i.blk)
            if "ds" in req:
                n = 0 if smem else min(req["ds"], 14); parts.append(f"lgkmcnt({n})"); apply("ds", n, i.blk)
                if n == 0 and i.blk is None:
                    smem = False
                    for r, p in pend.items():
                        if p.kind == "smem": p.done = True
            w = I("s_waitcnt " + " ".join(parts)); w.blk = i.blk
            out.append(w)
        if i.kind == "wait":
            m = re.search(r"vmcnt\((\d+)\)", i.text)
            if m: apply("vm", int(m.group(1)), i.blk)
            m = re.search(r"lgkmcnt\((\d+)\)", i.text)
            if m:
                n = int(m.group(1))
                if n == 0:
                    smem = False
                    for r, p in pend.items():
                        if p.kind == "smem": p.done = True
                if n == 0 or not smem: apply("ds", n, i.blk)
        if i.kind in VM or i.kind in DS:
            cl = "vm" if i.kind in VM else "ds"
            i.done = False
            seq[cl].append(i); cls_of[id(i)] = cl
            s = seq[cl]
            if snap is None:
                k = 0
                while k < len(s) and s[k].done: k += 1
                if k > 200: del s[:k - 100]
            o = sum(1 for z in s if not z.done)
            maxout[cl] = max(maxout[cl], o)
        if i.kind == "smem": smem = True; i.done = False
        for r in i.wr:
            if i.kind in ("vm_ld", "ds_rd", "smem"): pend[r] = i
            elif r in pend: del pend[r]
        if i.op != "@need": out.append(i)
    if verbose: print("max outstanding (static):", maxout)
    return out


def passes_of(i):
    if "_f32_16x16x4_f32" in i.op: return ("sgemm", 8)
    if "32x32" in i.op: return ("xdl", 8)
    return ("xdl", 4)


def states(i):
    if i.kind in ("meta", "label"): return 0
    if i.kind == "nop": return int(i.text.split()[1]) + 1
    return 1


def required(p, c):
    n = 0
    crd, cwr = set(c.rd), set(c.wr)
    if p.kind == "mfma":
        cl, ps = passes_of(p)
        D = set(p.wr)
        late = {("xdl", 4): 8, ("xdl", 8): 12, ("sgemm", 8): 10}[(cl, ps)]
        if c.kind == "mfma":
            if D & set(c.ab): n = max(n, late)
            if D & set(c.srcc):
                ccl, cps = passes_of(c)
                if tuple(p.wr) == tuple(c.srcc) and p.op == c.op: pass
                elif cl == "sgemm" and ccl == "xdl": pass
                else: n = max(n, {("xdl", 4): 6, ("xdl", 8): 10, ("sgemm", 8): 8}[(cl, ps)])
            elif D & cwr: n = max(n, late)
        elif c.kind in ("valu", "trans", "ds_rd", "ds_wr", "vm_ld", "vm_st", "dma"):
            if D & (crd | cwr): n = max(n, late)
            if c.kind in ("valu", "trans") and cl == "xdl" and set(p.srcc) & cwr: n = max(n, 3 if ps == 4 else 7)
    if p.kind in ("valu", "trans"):
        W = set(p.wr)
        vw = {r for r in W if r[0] in "va" and r != "vcc"}
        sw = W - vw
        if c.kind == "mfma" and vw & crd: n = max(n, 2)
        if c.kind in ("valu", "trans"):
            if c.op.startswith(("v_readfirstlane", "v_readlane")) and vw & crd: n = max(n, 1)
            if (c.op.startswith("v_permlane") or "dpp" in c.text or "row_" in c.text or "quad_perm" in c.text) and vw & crd: n = max(n, 2)
            if sw & crd: n = max(n, 2)
            if "vcc" in sw and c.op.startswith("v_cndmask") and "s[" not in c.text: n = max(n, 2)
            if p.kind == "trans" and c.kind == "valu" and vw & crd: n = max(n, 1)
        if c.kind in VM and sw & crd: n = max(n, 5)
    if p.kind == "salu" and "m0" in p.wr and c.kind == "dma": n = max(n, 1)
    if p.kind == "vm_st" and p.wide:
        data = set(regs_of(p.text.split(",")[0]))
        if data & cwr: n = max(n, 2 if c.kind in ("valu", "trans") else 1)
    return n


def pass_hazards(L):
    nblk = max([i.blk or 0 for i in L] + [0])
    total = 0
    while True:
        extra = {}
        for skip in [None] + list(range(1, nblk + 1)):
            V = [(k, i) for k, i in enumerate(L) if skip is None or i.blk != skip]
            for x in range(len(V)):
                k, c = V[x]
                if c.kind in ("meta", "label", "nop", "wait", "barrier", "branch"): continue
                dist = 0; y = x - 1
                while y >= 0 and dist < 12:
                    p = V[y][1]
                    r = required(p, c)
                    if r > dist: extra[k] = max(extra.get(k, 0), r - dist)
                    dist += states(p); y -= 1
        if not extra: break
        out = []; last = -100
        for k, i in enumerate(L):
            if k in extra and k - last > 12:
                w = I(f"s_nop {extra[k] - 1}"); w.blk = i.blk; out.append(w); last = k; total += extra[k]
            out.append(i)
        L = out
    return L, total


def finalize(prog, verbose=True):
    L = prog.L
    mark_blocks(L)
    L = pass_m0(L)
    L = pass_waits(L, verbose)
    L, nn = pass_hazards(L)
    if verbose:
        from collections import Counter
        c = Counter(i.kind for i in L)
        print("instructions:", dict(c), "nop states:", nn)
    lines = []
    for i in L:
        if i.op in ("@begin", "@end"): continue
        lines.append(i.text if i.kind == "label" else "  " + i.text + (f"  ; {i.note}" if i.note else ""))
    return "\n".join(lines)


class Stream:
    def __init__(self):
        self.mf = []; self.post = []; self.head = []

    def mfma(self, text):
        self.mf.append(I(text)); self.post.append([]); return len(self.mf) - 1

    def after(self, pos, *items, front=False):
        tgt = self.head if pos < 0 else self.post[min(pos, len(self.mf) - 1)]
        flat = []
        for it in items:
            if isinstance(it, (list, tuple)): flat += [I(x) if isinstance(x, str) else x for x in it]
            else: flat.append(I(it) if isinstance(it, str) else it)
        if front: tgt[0:0] = flat
        else: tgt += flat
        return flat[-1] if flat else None

    def spread(self, items, lo, hi):
        n = len(items); span = hi - lo
        for k, it in enumerate(items):
            self.after(lo + (k * span) // max(n, 1), it)

    def emit(self, prog):
        prog.add(self.head)
        for m, p in zip(self.mf, self.post):
            prog.add(m); prog.add(p)
```

```python
import sys, os
sys.path.insert(0, os.path.dirname(os.path.abspath(__file__)))
from asm import I, Prog, Stream, need, finalize

KN = "recurrent_scan__linear_kernel_hedgehog__dense_activation_relu__prompt"

SLOT = 36864
S3 = 110592
MISC = 148480
FS = MISC
PH = 156672
SPEC = PH + 2048
ZR, IR0, ET = SPEC, SPEC + 40, SPEC + 120
VIMG = MISC
FA = MISC
CB = MISC + 2048
RSH = 163328
HALF = 55296
MB = 1 << 20
F1, F2, F3, F4, F5 = 4096, 8192, 16384, 20480, 24576
WQ, WQP = 1 * MB, 132096
W2P, W2S = 4 * MB, 331776
WOP, WOS = 10 * MB, 165888
HB = 12 * MB
KV1, KVC = 32 * MB, 33 * MB
OB = 36 * MB
PART = 40 * MB
STAMP = 60 * MB
OOB = 0x40000000
X, WQKV, WPHI, RP, W1, OUT, DBG, WS = "s[4:7]", "s[8:11]", "s[12:15]", "s[16:19]", "s[20:23]", "s[28:31]", "s[32:35]", "s[36:39]"
sM, sC, sN, sJ, sW, sLW = "s60", "s61", "s62", "s63", "s64", "s65"
sW1, sST, sRPs, sRPd = "s68", "s69", "s70", "s71"
MK = ["s[72:73]", "s[74:75]", "s[76:77]", "s[78:79]"]
sFX, sFY, sHO, sCNT = "s80", "s81", "s82", "s83"
tDMA, tA, tB, tC_, tD = "s84", "s85", "s86", "s87", "s88"
sFS, sW2K = "s89", "s90"
sHR = [None, "s91", "s92", "s93"]
sF = "s94"
sFP = "s95"
sOUT, sOUT8, sWO = "s96", "s97", "s98"
LOG2E = 0x3FB8AA3B


def vr(b, n=4): return f"v[{b}:{b + n - 1}]"
def ar(b, n=4): return f"a[{b}:{b + n - 1}]"
def mf(d, a, b, c): return f"v_mfma_f32_16x16x32_bf16 {d}, {a}, {b}, {c}"


def lanemask(pred):
    m = 0
    for l in range(64):
        if pred(l): m |= 1 << l
    return m


def setmask(pair, m, op="s_mov_b32"):
    lo = int(pair[2:pair.index(":")])
    return [f"{op} s{lo}, {m & 0xffffffff:#x}", f"{op} s{lo + 1}, {m >> 32:#x}"]


class Seq:
    def __init__(self, tmp): self.tmp = tmp; self.cur = None

    def at(self, base, const):
        hi, lo = const & ~4095, const & 4095
        if hi == 0: return [], base, lo
        pre = []
        if self.cur != (base, hi):
            pre = [I(f"s_add_u32 {self.tmp}, {base}, {hi}")]; self.cur = (base, hi)
        return pre, self.tmp, lo


def off(n): return f" offset:{n}" if n else ""


def build(opt):
    P = Prog()
    A = P.add
    nlab = [0]
    stamps = []; cnt = [0]
    SREG = [24, 25, 26, 27, 66] + list(range(46, 60))

    def stamp(name):
        sel = opt.get("stamps")
        if not sel: return []
        cnt[0] += 1
        if name not in ("setup", "end") and sel < 3 and (cnt[0] & 1) != (sel & 1): return []
        k = len(stamps); stamps.append(name)
        return [I(f"s_memrealtime s[100:101]"), I("s_waitcnt lgkmcnt(0)"), I(f"s_mov_b32 s{SREG[k]}, s100")]

    def check(load_text, cmp_text, ident):
        nlab[0] += 1; n = nlab[0]
        return [I(cmp_text), I(f"s_cbranch_vccz L_ok{n}"), I("@begin"),
                I(f"s_mov_b32 {sCNT}, 0x8000"), I(f"L_spin{n}:"), I(load_text), I("s_waitcnt vmcnt(0)"),
                I(cmp_text), I(f"s_cbranch_vccz L_ok{n}"), I(f"s_sub_u32 {sCNT}, {sCNT}, 1"), I(f"s_cbranch_scc0 L_spin{n}"),
                I(f"buffer_store_dword v1, off, {DBG}, 0 offset:{16 + 4 * ident} sc1"), I("s_waitcnt vmcnt(0)"),
                I("@end"), I(f"L_ok{n}:")]

    CMPF = "v_cmp_ne_u32 vcc, v7, v31"

    A("s_cmp_ge_u32 s2, 256")
    A("s_cbranch_scc1 L_end")
    A("s_load_dwordx16 s[40:55], s[0:1], 0")
    A("s_load_dwordx4 s[56:59], s[0:1], 64")
    A("""v_lshrrev_b32 v1, 6, v0
         v_and_b32 v0, 63, v0
         v_readfirstlane_b32 s64, v1
         s_and_b32 s3, s2, 7
         s_lshr_b32 s66, s2, 3
         s_and_b32 s61, s3, 3
         s_lshr_b32 s3, s3, 2
         s_lshl_b32 s3, s3, 3
         s_lshr_b32 s60, s66, 2
         s_add_u32 s60, s60, s3
         s_and_b32 s62, s66, 3
         s_lshl_b32 s63, s61, 2
         s_add_u32 s63, s63, s62
         s_mul_i32 s65, s64, 9216""")
    tG, tI, tR, tC = "v76", "v77", "v78", "v79"
    a_, b_, c_, d_, e_ = "v80", "v81", "v82", "v83", "v84"
    A(f"""v_lshrrev_b32 {tG}, 4, v0
          v_and_b32 {tI}, 15, v0
          v_bfe_u32 {tR}, v0, 2, 2
          v_and_b32 {tC}, 3, v0
          v_lshlrev_b32 v1, 4, v0
          v_lshrrev_b32 v27, 3, v0
          v_mul_u32_u24 v27, 1152, v27
          v_and_b32 v28, 7, v0
          v_xor_b32 v28, v28, {tG}
          v_lshl_add_u32 v27, v28, 4, v27
          v_xor_b32 v28, 64, v27
          s_mul_i32 s84, {sM}, 147456
          s_mul_i32 s85, {sW}, 36864
          s_add_u32 s84, s84, s85
          s_add_u32 s85, s84, 9216
          s_add_u32 s86, s84, 18432
          s_add_u32 s87, s84, 27648
          s_mov_b32 s6, 2359296
          s_mov_b32 s7, 0x20000
          s_waitcnt lgkmcnt(0)
          s_mov_b32 s4, s40
          s_mov_b32 s5, s41
          s_load_dword s67, s[58:59], 0""")
    xd = [[], []]
    for sg in range(4):
        for d in range(9):
            xd[sg >> 1].append(A(I(f"buffer_load_dwordx4 v{27 + (sg & 1)}, {X}, s{84 + sg} offen{off(128 * d)} lds", m0=(sLW, sg * SLOT + 896 * d))))
    for base, src, n in ((8, 42, 1990656), (12, 44, 20736), (20, 50, 5308416), (28, 54, 2359296), (32, 56, 256), (36, 58, 268435456)):
        A(f"s_mov_b32 s{base}, s{src}\n s_mov_b32 s{base + 1}, s{src + 1}\n s_mov_b32 s{base + 2}, {n}\n s_mov_b32 s{base + 3}, 0x20000")
    A(f"""s_cmp_le_u32 {sM}, 8
          s_cselect_b32 s16, s52, s46
          s_cselect_b32 s17, s53, s47
          s_mov_b32 s18, 663552
          s_cmov_b32 s18, 5308416
          s_mov_b32 s19, 0x20000""")
    A(f"""s_lshl_b32 s84, {sW}, 7
          s_lshl_b32 s85, {sW}, 9
          s_mul_i32 s86, {sJ}, 1296""")
    for dd in range(2):
        o = f"v{85 + dd}"
        A(f"v_add_u32 {a_}, s84, v0" if dd == 0 else f"v_add_u32 {a_}, 64, {a_}")
        A(f"""v_mul_u32_u24 {b_}, 6554, {a_}
              v_lshrrev_b32 {b_}, 16, {b_}
              v_mad_i32_i24 {c_}, {b_}, -10, {a_}
              v_mul_u32_u24 {o}, 36, {b_}
              v_lshl_add_u32 {o}, {c_}, 2, {o}
              v_cmp_gt_u32 vcc, 9, {c_}
              v_cndmask_b32 {o}, {OOB}, {o}, vcc
              v_cmp_gt_u32 vcc, 36, {b_}
              v_cndmask_b32 {o}, {OOB}, {o}, vcc""")
        A(I(f"buffer_load_dword {o}, {WPHI}, s86 offen lds", m0=("s85", PH + 256 * dd)))
    A(f"""s_and_b32 s84, {sW}, 1
          s_lshl_b32 s85, s84, 3
          s_lshl_b32 s84, s84, 4
          s_lshr_b32 s86, {sW}, 1
          s_lshl_b32 s86, s86, 2
          s_add_u32 s84, s84, s86
          s_lshl_b32 s86, {sM}, 5
          s_add_u32 s84, s84, s86
          s_mul_i32 s84, s84, 3456
          s_mul_i32 s86, {sJ}, 72
          s_add_u32 {sFS}, s84, s86
          s_lshl_b32 {sW2K}, {sW}, 11
          s_movk_i32 s86, 3456
          v_add_u32 {a_}, s85, {tG}
          v_xor_b32 {a_}, {a_}, {tI}
          v_and_b32 {b_}, 3, {a_}
          v_min_u32 {c_}, 2, {b_}
          v_mul_u32_u24 {c_}, 1152, {c_}
          v_add_u32 {c_}, 64, {c_}
          v_cmp_eq_u32 vcc, 2, {b_}
          v_subrev_u32 {d_}, 32, {c_}
          v_cndmask_b32 {c_}, {c_}, {d_}, vcc
          v_cmp_eq_u32 vcc, 3, {b_}
          v_add_u32 {d_}, 4, {c_}
          v_cndmask_b32 {c_}, {c_}, {d_}, vcc""")
    for dd in range(2):
        o = f"v{253 + dd}"
        A(f"v_lshrrev_b32 {a_}, 2, {a_}" if dd == 0 else f"v_xor_b32 {a_}, 1, {a_}")
        A(f"""v_mul_u32_u24 {d_}, 1152, {a_}
              v_lshl_add_u32 {d_}, {b_}, 4, {d_}
              v_lshrrev_b32 {e_}, 1, {b_}
              v_lshl_add_u32 {e_}, {e_}, 2, {d_}
              v_cmp_eq_u32 vcc, 2, {a_}
              v_cndmask_b32 {d_}, {d_}, {e_}, vcc
              v_cmp_eq_u32 vcc, 3, {a_}
              v_cndmask_b32 {d_}, {d_}, {c_}, vcc
              v_mad_u32_u24 {o}, {tG}, s86, {d_}""")
        if dd: A(f"s_add_u32 s84, {sFS}, {8 * 3456}")
        A(I(f"buffer_load_dwordx4 {o}, {WQKV}, {'s84' if dd else sFS} offen lds", m0=(sW2K, FS + 1024 * dd)))
    A(f"""s_mov_b32 s84, -18
          s_movk_i32 s85, 9216
          s_movk_i32 s86, 1152
          s_mov_b32 s40, 0
          s_mov_b32 s41, 0
          s_mov_b32 s42, 0
          s_cmp_eq_u32 {sM}, 9
          s_cmov_b32 s40, 2
          s_cmp_eq_u32 {sM}, 10
          s_cmov_b32 s40, 20
          s_cmov_b32 s41, 68
          s_cmov_b32 s42, 16""")
    for d in range(9):
        q = "v0"
        if d: A(f"v_add_u32 {a_}, {64 * d}, v0"); q = a_
        A(f"""v_mul_u32_u24 {b_}, 3641, {q}
              v_lshrrev_b32 {b_}, 16, {b_}
              v_mad_i32_i24 {c_}, {b_}, s84, {q}
              v_lshlrev_b32 {c_}, 4, {c_}""")
        if d % 4: A(f"v_subrev_u32 {c_}, {(d % 4) * 1024}, {c_}")
        A(f"""v_and_b32 {d_}, 0x13, {b_}
              v_bfe_u32 {e_}, {b_}, 2, 1
              v_lshl_or_b32 {d_}, {e_}, 3, {d_}
              v_bfe_u32 {e_}, {b_}, 3, 1
              v_lshl_or_b32 {d_}, {e_}, 2, {d_}
              v_mad_u32_u24 v{8 + d}, {d_}, s85, {c_}
              v_lshrrev_b32 {e_}, 4, {b_}
              v_mad_u32_u24 {d_}, {e_}, s40, {b_}
              v_bfe_u32 {e_}, {b_}, 2, 2
              v_mad_u32_u24 {d_}, {e_}, s41, {d_}
              v_bfe_u32 {e_}, {b_}, 1, 1
              v_mad_u32_u24 {d_}, {e_}, s42, {d_}
              v_mad_u32_u24 v{64 + d}, {d_}, s86, {c_}""")
    A(f"""s_and_b32 s84, {sW}, 1
          s_mul_i32 s84, s84, {32 * 9216}
          s_lshr_b32 s85, {sW}, 1
          s_mul_i32 s85, s85, 288
          s_add_u32 s84, s84, s85
          s_mul_i32 s85, {sJ}, 576
          s_add_u32 {sW1}, s84, s85""")
    A(f"""s_lshl_b32 s84, {sM}, 2
          s_add_u32 s84, s84, {sW}
          s_mul_i32 s85, s84, 57
          s_lshr_b32 s85, s85, 9
          s_mul_i32 s86, s85, 9
          s_sub_u32 s86, s84, s86
          s_xor_b32 s85, s85, {sN}
          s_lshl_b32 s87, {sC}, 2
          s_add_u32 s85, s85, s87
          s_mul_i32 s85, s85, 288
          s_lshl_b32 s86, s86, 5
          s_add_u32 s85, s85, s86
          s_mul_i32 s40, s85, 1152
          s_mul_i32 s41, {sJ}, {W2S}
          s_mul_i32 s84, s84, 9216
          s_add_u32 s41, s41, s84
          s_add_u32 s41, s41, {W2P}
          s_add_u32 s87, s87, {sW}
          s_mul_i32 s42, s87, {36 * 1152}
          s_mul_i32 {sWO}, {sN}, {WOS}
          s_add_u32 {sWO}, {sWO}, {WOP}
          s_mul_i32 s87, s87, 9216
          s_add_u32 s43, {sWO}, s87
          s_mul_i32 s44, {sC}, {288 * 1152}
          s_add_u32 s44, s44, {16 * 1152}
          s_mul_i32 s45, {sC}, 9216
          s_add_u32 s45, s45, {sWO}
          s_add_u32 s45, s45, {16 * 9216}
          s_mov_b32 {sRPs}, {OOB}
          s_mov_b32 {sRPd}, {OOB}
          s_cmp_le_u32 {sM}, 8
          s_cmov_b32 {sRPs}, s40
          s_cmov_b32 {sRPd}, s41
          s_cmp_eq_u32 {sM}, 9
          s_cmov_b32 {sRPs}, s42
          s_cmov_b32 {sRPd}, s43
          s_lshr_b32 s84, {sC}, 1
          s_or_b32 s84, s84, {sW}
          s_xor_b32 s85, {sM}, 10
          s_or_b32 s84, s84, s85
          s_cmp_eq_u32 s84, 0
          s_cmov_b32 {sRPs}, s44
          s_cmov_b32 {sRPd}, s45
          s_mul_i32 s84, {sN}, 288
          s_add_u32 {sRPs}, {sRPs}, s84""")
    A(f"""s_lshl_b32 s84, {sM}, 1
          s_cmp_eq_u32 {sW}, 2
          s_cmov_b32 s84, {sM}
          s_mul_i32 s85, {sW}, 36
          s_min_u32 s85, s85, 90
          s_add_u32 s84, s84, s85
          s_lshl_b32 s84, s84, 10
          s_mul_i32 s85, {sJ}, {WQP}
          s_add_u32 s85, s85, {WQ}
          s_add_u32 {sFX}, s84, s85
          s_add_u32 {sST}, s85, {sLW}
          s_add_u32 {sFY}, {sFX}, 1024
          s_cmp_eq_u32 {sW}, 2
          s_cmov_b32 {sFY}, {OOB}
          s_lshl_b32 s84, {sM}, 2
          s_add_u32 s84, s84, {sW}
          s_lshl_b32 s84, s84, 4
          s_lshl_b32 s85, {sC}, 2
          s_add_u32 s84, s84, s85""")
    for dl in range(4):
        dst = sHO if dl == 0 else sHR[dl]
        A(f"""s_xor_b32 s85, {sN}, {dl}
              s_add_u32 s85, s85, s84
              s_mul_i32 s85, s85, 18432
              s_add_u32 {dst}, s85, {HB}""")
    A(f"""v_lshrrev_b32 {a_}, 3, {tI}
          v_mul_u32_u24 {a_}, 36864, {a_}
          v_and_b32 {b_}, 7, {tI}
          v_lshl_add_u32 {a_}, {b_}, 7, {a_}
          v_lshrrev_b32 {b_}, 1, {tI}
          v_xor_b32 {b_}, {b_}, {tG}
          v_lshl_add_u32 {a_}, {b_}, 4, {a_}
          v_add_u32 v29, {sLW}, {a_}
          v_xor_b32 v30, 64, v29
          v_lshrrev_b32 {a_}, 1, {tG}
          v_lshl_add_u32 {a_}, {a_}, 4, {tR}
          v_and_b32 {b_}, 1, {tG}
          v_lshl_add_u32 {a_}, {b_}, 2, {a_}
          v_mul_u32_u24 {a_}, 288, {a_}
          v_lshl_add_u32 v2, {tC}, 3, {a_}
          v_add_u32 v3, {HALF}, v2
          v_add_u32 v4, {HALF}, v1
          v_lshrrev_b32 {a_}, 2, v0
          v_mul_u32_u24 {a_}, 288, {a_}
          s_add_u32 s84, {sLW}, {S3}
          v_add_u32 {a_}, s84, {a_}
          v_lshl_add_u32 v17, {tC}, 4, {a_}
          v_lshl_add_u32 v18, {tC}, 3, {a_}
          v_add_u32 v18, 256, v18
          v_xor_b32 {a_}, {tG}, {tI}
          v_lshlrev_b32 {a_}, 4, {a_}
          v_lshl_add_u32 {a_}, {tI}, 8, {a_}
          v_add_u32 {a_}, {S3}, {a_}
          v_xor_b32 v25, 64, {a_}
          v_xor_b32 v26, 192, {a_}
          s_cmp_eq_u32 {sW}, 3
          s_cselect_b32 s84, 128, 0
          s_cselect_b64 s[44:45], -1, 0
          v_xor_b32 v24, s84, {a_}""")
    g_, r_, cg_ = (lambda l: l >> 4), (lambda l: (l >> 2) & 3), (lambda l: l & 3)
    A(f"""s_lshl_b32 s84, {sW}, 4
          s_add_u32 s85, s84, {PH}
          s_add_u32 s86, s84, {IR0}
          v_mov_b32 {e_}, {ZR}
          v_mul_u32_u24 {b_}, 24, {tR}
          v_add_u32 {b_}, {ET}, {b_}
          v_add_u32 {c_}, 8, {b_}
          v_cmp_gt_u32 vcc, 32, v0
          v_cndmask_b32 {b_}, {b_}, {c_}, vcc
          v_lshl_add_u32 {a_}, {tG}, 3, {tR}
          v_mad_u32_u24 {a_}, {a_}, 40, s85""")
    for h in range(2):
        hd = lambda l: int(8 * g_(l) + 4 * h + r_(l) >= 18)
        if h: A(f"v_add_u32 {a_}, 160, {a_}")
        A(f"s_cmp_eq_u32 {sW}, 3")
        A(setmask("s[40:41]", lanemask(lambda l: cg_(l) == hd(l))))
        A(setmask("s[40:41]", lanemask(lambda l: cg_(l) == 2 * (g_(l) & 1) + h), "s_cmov_b32"))
        A(setmask("s[42:43]", lanemask(lambda l: cg_(l) == hd(l) + 2)))
        A(setmask("s[42:43]", 0, "s_cmov_b32"))
        A(f"""v_cndmask_b32 {c_}, {a_}, {b_}, s[44:45]
              v_cndmask_b32 v{19 + h}, {e_}, {c_}, s[40:41]
              v_cndmask_b32 v{21 + h}, {e_}, {a_}, s[42:43]""")
    A(f"s_cmp_eq_u32 {sW}, 3")
    A(setmask("s[40:41]", lanemask(lambda l: (g_(l), cg_(l)) in ((0, 1), (1, 3)))))
    A(setmask("s[40:41]", 0, "s_cmov_b32"))
    A(setmask("s[42:43]", lanemask(lambda l: (g_(l), cg_(l)) in ((2, 0), (3, 1)) and r_(l) < 2)))
    A(setmask("s[42:43]", 0, "s_cmov_b32"))
    A(f"""v_mad_u32_u24 {a_}, {tR}, 40, s85
          v_add_u32 {a_}, {32 * 40}, {a_}
          v_mad_u32_u24 {b_}, {tR}, 40, s86
          v_cndmask_b32 v23, {e_}, {a_}, s[40:41]
          v_cndmask_b32 v23, v23, {b_}, s[42:43]""")
    for r in range(4): A(setmask(MK[r], lanemask(lambda l: l == 20 * (l >> 4) + r)))
    A(setmask("s[40:41]", lanemask(lambda l: l in (19, 32, 45))))
    A(setmask("s[42:43]", lanemask(lambda l: l in (29, 38, 51))))
    A(f"""v_mov_b32 v248, 0x3f803f80
          v_mov_b32 v249, 0x3f803f80
          v_mov_b32 v250, 0x3f803f80
          v_mov_b32 v251, 0x3f803f80
          v_mov_b32 v252, 1.0
          v_mov_b32 {a_}, 0x3f80
          v_cndmask_b32 {b_}, 0, {a_}, {MK[0]}
          v_cndmask_b32 {b_}, {b_}, v252, {MK[1]}
          v_cndmask_b32 {c_}, 0, {a_}, {MK[2]}
          v_cndmask_b32 {c_}, {c_}, v252, {MK[3]}
          v_accvgpr_write_b32 a248, 0
          v_accvgpr_write_b32 a249, 0
          v_accvgpr_write_b32 a250, {b_}
          v_accvgpr_write_b32 a251, {c_}
          v_accvgpr_write_b32 a252, 0
          v_accvgpr_write_b32 a253, 0
          v_cndmask_b32 {b_}, 0, {a_}, s[40:41]
          v_cndmask_b32 {b_}, {b_}, v252, s[42:43]
          v_lshlrev_b32 {c_}, 2, v0
          v_add_u32 {c_}, {SPEC}, {c_}
          v_or_b32 {d_}, {sW}, v0
          v_cmp_eq_u32 vcc, 0, {d_}
          v_mov_b32 v27, {OOB}
          v_cndmask_b32 v27, v27, 0, vcc
          s_waitcnt lgkmcnt(0)
          ds_write_b32 {c_}, {b_}""")
    for q in range(4):
        A(f"v_accvgpr_write_b32 a{122 + (q >> 1) * 4 + (q & 1)}, 0")
    SEL = [ar(250), ar(248)]
    A(f"s_or_b32 s84, s2, {sW}\n s_cmp_lg_u32 s84, 0\n s_cbranch_scc1 L_noepoch")
    P.begin()
    A(f"""s_mul_i32 s67, s67, 0x41c64e6d
          s_add_u32 s67, s67, 0x3039
          s_cmp_eq_u32 s67, 0
          s_cmov_b32 s67, 0x3039
          v_mov_b32 v31, s67
          buffer_store_dword v31, v27, {WS}, 0 offen sc1
          buffer_store_dword v31, v27, {DBG}, 0 offen sc1""")
    P.end()
    A("L_noepoch:")
    A(stamp("setup"))

    w1seq = {}

    def w1dma(S, d):
        pre = []
        if d == 0 and S > 0: pre = [I(f"s_add_u32 {sW1}, {sW1}, {64 * 9216}")]
        i = I(f"buffer_load_dwordx4 v{8 + d}, {W1}, {sW1} offen{off((d % 4) * 1024)} lds", m0=(sLW, (S % 3) * SLOT + (d // 4) * 4096))
        w1seq.setdefault(S, []).append(i)
        return pre + [i]

    def ln_stats(tt, su, sq, after):
        raw = 104 + 72 * tt
        A(need(xd[tt]))
        if tt: A("v_add_u32 v29, 73728, v29\n v_add_u32 v30, 73728, v30")
        rd = [A(f"ds_read_b128 {vr(raw + 4 * s)}, v{29 + (s & 1)}{off((s >> 1) * 1024)}") for s in range(18)]
        for s in range(18):
            x = vr(raw + 4 * s)
            A(mf(vr(su), vr(248), x, vr(su) if s else 0))
            A(mf(vr(sq), x, x, vr(sq) if s else 0))
            if s & 1: A(after(s >> 1))

    def ln_post(tt, su, sq, bc, nm):
        A(f"v_cndmask_b32 v28, 0, v{sq}, {MK[0]}")
        for r in range(1, 4): A(f"v_cndmask_b32 v28, v28, v{sq + r}, {MK[r]}")
        A(f"v_mfma_f32_16x16x4_f32 {vr(bc)}, v252, v28, 0")
        for r in range(4): A(f"v_mul_f32 v{nm + r}, 0xbae38e39, v{su + r}")

    def ln_rstd(tt, bc, nm):
        return [f"v_mul_f32 v28, 0x3ae38e39, v{bc}",
                f"v_fma_f32 v28, -v{nm}, v{nm}, v28",
                "v_max_f32 v28, 0, v28",
                "v_add_f32 v28, 0x3727c5ac, v28",
                f"v_rsq_f32 v{5 + tt}, v28"]

    def ln_center(tt, nm, tmp, nset, lag, extra):
        raw = 104 + 72 * tt
        def ops(s):
            D = tmp + 8 * (s % nset)
            dst = D if tt == 0 else 32 + 4 * s
            for q in range(4): A(f"v_cvt_pk_bf16_f32 v{dst + q}, v{D + 2 * q}, v{D + 2 * q + 1}")
            if tt == 0:
                for q in range(4): A(f"v_accvgpr_write_b32 a{4 * s + q}, v{D + q}")
        for s in range(18 + lag):
            if s < 18:
                D = tmp + 8 * (s % nset)
                A(mf(vr(D), SEL[0], vr(raw + 4 * s), vr(nm)))
                A(mf(vr(D + 4), SEL[1], vr(raw + 4 * s), vr(nm)))
            if s == 0: A(extra)
            if s >= lag: ops(s - lag)

    ln_stats(0, 32, 36, lambda d: w1dma(0, d))
    for d in range(9): A(w1dma(1, d))
    ln_post(0, 32, 36, 40, 32)
    ln_center(0, 32, 80, 2, 1, ln_rstd(0, 40, 32))
    A(stamp("ln0"))
    ln_stats(1, 96, 100, lambda d: w1dma(2, d))
    A(f"s_cmp_ge_u32 {sRPs}, {OOB}\n s_cbranch_scc1 L_norp")
    P.begin()
    rpd = [A(I(f"buffer_load_dwordx4 v{64 + d}, {RP}, {sRPs} offen{off((d % 4) * 1024)} lds", m0=(sLW, S3 + (d // 4) * 4096))) for d in range(9)]
    P.end()
    A("L_norp:")
    ln_post(1, 96, 100, 108, 104)
    ln_center(1, 104, 112, 3, 2, ln_rstd(1, 108, 104))
    A(f"""v_and_b32 v28, 15, v0
          s_lshl_b32 s84, {sW}, 7
          s_add_u32 s84, s84, {RSH}
          v_lshl_add_u32 v28, v28, 2, s84
          ds_write_b32 v28, v5
          ds_write_b32 v28, v6 offset:64""")
    A(stamp("ln1"))

    dma_of = dict(w1seq)
    stseq = Seq(tDMA)

    def stream_dma(S, d):
        pre = []
        if S == 13 and d == 0:
            pre = [I(f"s_mul_i32 {sST}, {sJ}, {W2S}"), I(f"s_add_u32 {sST}, {sST}, {W2P}"), I(f"s_add_u32 {sST}, {sST}, {sLW}")]
            stseq.cur = None
        if S == 12:
            if d == 0:
                pre = [I(f"s_lshl_b32 s99, {sW}, 12"), I(f"s_sub_u32 {sST}, {sST}, s99"), I(f"s_mul_i32 s99, {sW}, 5120")]
                stseq.cur = None
            p2, so, lo = stseq.at(sST, 3 * SLOT + d * 1024)
            i = I(f"buffer_load_dwordx4 v1, {WS}, {so} offen{off(lo)} sc1 lds", m0=("s99", (S % 3) * SLOT + d * 1024 - lo))
        else:
            c = (S - 9 if S < 13 else S - 13) * SLOT + d * 1024
            p2, so, lo = stseq.at(sST, c)
            i = I(f"buffer_load_dwordx4 v1, {WS}, {so} offen{off(lo)} sc1 lds", m0=(sLW, (S % 3) * SLOT + d * 1024 - lo))
        dma_of.setdefault(S, []).append(i)
        return pre + p2 + [i]

    def dma_items(S):
        if S <= 8:
            r = [w1dma(S, d) for d in range(9)]; dma_of[S] = w1seq[S]; return r
        return [stream_dma(S, d) for d in range(5 if S == 12 else 9)]

    def ldsoff(o, lo, hi): return (lo, o) if o < HALF else (hi, o - HALF)

    def gemm(frags, la, nb, ring, first_barrier=True):
        S = Stream(); reads = []; bar = {}; barneed = {}
        for n, (st, first, rd, mm) in enumerate(frags):
            for t in mm(ar(ring + 4 * (n % nb))): S.mfma(t)
        for n, (st, first, rd, mm) in enumerate(frags):
            pos = 2 * (n - la)
            if first:
                bar[st] = max(pos, -1)
                if n or first_barrier:
                    barneed[st] = need()
                    S.after(bar[st], barneed[st], "s_barrier", stamp(f"B{st}"))
            rs = [I(t) for t in rd(ring + 4 * (n % nb))]
            reads.append(rs)
            for k, r in enumerate(rs): S.after(pos + k if pos >= 0 else -1, r)
        for n in range(0, len(frags) - 1, 2): S.mf[2 * n].deps += reads[n + 1]
        return S, bar, barneed

    def b128(slot, f):
        base, o = ldsoff(slot * SLOT + f * 1024, "v1", "v4")
        return lambda r: [f"ds_read_b128 {ar(r)}, {base}{off(o)}"]

    XC = lambda tt, s: ar(4 * s) if tt == 0 else vr(32 + 4 * s)
    fr = []
    for St in range(9):
        for f in range(36):
            ks, T = divmod(f, 18); b, Tp = divmod(T, 9); s = 2 * St + ks
            base, o = ldsoff((St % 3) * SLOT + b * 18432 + ks * 9216 + 32 * Tp, "v2", "v3")
            rd = lambda r, base=base, o=o: [f"ds_read_b64_tr_b16 {ar(r, 2)}, {base}{off(o)}", f"ds_read_b64_tr_b16 {ar(r + 2, 2)}, {base}{off(o + 2304)}"]
            acc = 104 + 16 * (T >> 1) + 8 * (T & 1)
            mm = lambda a, acc=acc, s=s: [mf(vr(acc + 4 * tt), a, XC(tt, s), vr(acc + 4 * tt) if s else 0) for tt in range(2)]
            fr.append((St, f == 0, rd, mm))
    TACC = [248, 8, 112, 128, 144, 160, 176]
    for f in range(126):
        if f < 72: tile, s = 2 * (f // 36) + (f & 1), (f % 36) >> 1
        elif f < 90: tile, s = 4, f - 72
        else: tile, s = 5 + (f & 1), (f - 90) >> 1
        St = 9 + f // 36
        acc = TACC[tile]
        mm = lambda a, acc=acc, s=s: [mf(vr(acc + 4 * tt), a, XC(tt, s), vr(acc + 4 * tt) if s else 0) for tt in range(2)]
        fr.append((St, f % 36 == 0, b128(St % 3, f % 36), mm))
    SA, bar, bn = gemm(fr, opt.get("laA", 6), 8, 72)
    dstart, dstep = opt.get("dstart", 4), opt.get("dstep", 4)
    for St in range(1, 13):
        for d, it in enumerate(dma_items(St + 2)): SA.after(bar[St] + dstart + dstep * d, it)
    for St in range(13): bn[St].deps += dma_of[St]

    FB, FAa = 104, 128
    foldB = []
    for ty, regs in enumerate((("v19", "v20"), ("v21", "v22"), ("v23",))):
        for x in range(2):
            for h, va in enumerate(regs):
                foldB.append(I(f"ds_read_b64_tr_b16 {ar(FB + 8 * ty + 4 * x + 2 * h, 2)}, {va}{off(8 * x)}"))

    def fold_unit(base, dx, dy):
        rd = [I(f"ds_read_b128 {ar(FAa + 8 * ty + 4 * be)}, v{24 + ty}{off(base + 4096 * be)}") for ty in range(3) for be in range(2)]
        mm = [[I(mf(vr(248 + 4 * be), ar(FAa + 8 * ty + 4 * be), ar(FB + 8 * ty + 4 * x), vr(248 + 4 * be) if ty else 0))
               for ty in range(3) for be in range(2)] for x in range(2)]
        cv = [[I(f"v_cvt_pk_bf16_f32 v{(248, 28)[x] + q}, v{248 + 2 * q}, v{249 + 2 * q}") for q in range(4)] for x in range(2)]
        st = [I(f"buffer_store_dwordx4 {vr((248, 28)[x])}, v1, {WS}, {(dx, dy)[x]} offen sc1") for x in range(2)]
        return rd, mm, cv, st
    fs2 = [I(f"buffer_load_dwordx4 v{253 + dd}, {WQKV}, {tA} offen lds", m0=(sW2K, S3 + 1024 * dd)) for dd in range(2)]
    SA.after(-1, f"s_cmp_lt_u32 {sM}, 14", "s_cbranch_scc1 L_nofs2", "@begin",
             f"s_add_u32 {tA}, {sFS}, {64 * 3456}", fs2[0], f"s_add_u32 {tA}, {tA}, {8 * 3456}", fs2[1], "@end", "L_nofs2:")
    bn[2].deps += fs2
    rd, mm, cv, st1 = fold_unit(FS - S3, sFX, sFY)
    SA.spread(foldB + rd, 0, 16)
    SA.spread(mm[1], 20, 32); SA.spread(cv[1], 36, 40); SA.after(41, st1[1])
    SA.spread(mm[0], 42, 54); SA.spread(cv[0], 58, 62); SA.after(63, st1[0])
    rd, mm, cv, st2 = fold_unit(0, tA, tB)
    SA.after(bar[2] + 2, f"s_cmp_lt_u32 {sM}, 14", "s_cbranch_scc1 L_nof2", "@begin",
             f"s_cmp_eq_u32 {sW}, 2", f"s_movk_i32 {tA}, 4096", f"s_cmovk_i32 {tA}, 2048", f"s_add_u32 {tA}, {tA}, {sFX}", f"s_add_u32 {tB}, {sFY}, 4096",
             rd, mm[1], cv[1], st2[1], mm[0], cv[0], st2[0], "@end", "L_nof2:")
    RPA = 152
    rpr, rps = [], []
    sq = Seq(tC_)
    for T in range(9):
        va, o = ("v17", 64 * (T >> 1) + 8 * (T & 1)) if T < 8 else ("v18", 0)
        rpr += [I(f"ds_read_b64_tr_b16 {ar(RPA + 4 * T + 2 * h, 2)}, {va}{off(o + 4608 * h)}") for h in range(2)]
        pre, so, lo = sq.at(sRPd, T * 1024)
        rps.append(pre + [I(f"buffer_store_dwordx4 {ar(RPA + 4 * T)}, v1, {WS}, {so} offen{off(lo)} sc1")])
    p0 = bar[2] + opt.get("rp0", 24)
    SA.after(p0 - 1, need(rpd))
    SA.spread(rpr, p0, p0 + 18); SA.spread(rps, p0 + 22, p0 + 40)
    nl = f"buffer_load_dword v7, off, {DBG}, 0 sc1"
    SA.after(bar[1] + 1, nl)
    SA.after(bar[3] - 1, check(nl, "v_cmp_eq_u32 vcc, 0, v7", 0))
    bn[4].deps += st1 + st2 + [x[-1] for x in rps]

    def signal(pre): return pre + [f"buffer_store_dword v7, v27, {WS}, {sF} offen sc1"]
    SA.after(bar[4] + 1, signal([f"s_lshl_b32 {sF}, {sJ}, 5", f"s_add_u32 {sF}, {sF}, {sM}", f"s_lshl_b32 {sF}, {sF}, 2", f"s_add_u32 {sF}, {sF}, {F1}"]))
    f1a = [f"v_and_b32 v28, 15, v0", f"v_lshlrev_b32 v28, 2, v28", f"s_lshl_b32 {tA}, {sJ}, 7", f"v_add_u32 v28, {tA}, v28",
           f"v_and_b32 v29, 3, v0", f"v_lshlrev_b32 v29, 9, v29", f"s_lshl_b32 {tA}, {sN}, 7", f"v_add_u32 v29, {tA}, v29",
           f"v_bfe_u32 v30, v0, 2, 1", f"v_lshl_add_u32 v29, v30, 2, v29", f"v_add_u32 v29, 36, v29",
           setmask("s[40:41]", lanemask(lambda l: 16 <= l < 22)), f"v_cndmask_b32 v28, v28, v29, s[40:41]", f"s_movk_i32 {sFP}, {F1}"]
    SA.spread(f1a, bar[5] + 2, bar[5] + 30)
    fl = f"buffer_load_dword v31, v28, {WS}, {sFP} offen sc1"
    SA.after(bar[6] + 1, fl)
    SA.after(bar[7] - 1, check(fl, CMPF, 1))
    sq = Seq(tC_)
    wol = [[I(f"s_lshl_b32 {tD}, {sW}, 11"), I(f"s_add_u32 {tD}, {tD}, {sWO}")]]
    for k in range(18):
        for x in range(2):
            c = k * 9216 + x * 1024
            pre = [I(f"s_add_u32 {tC_}, {tD}, {k * 9216}")] if x == 0 else []
            wol.append(pre + [I(f"buffer_load_dwordx4 {ar(104 + 72 * x + 4 * k)}, v1, {WS}, {tC_} offen{off(x * 1024)} sc1")])
    SA.spread(wol, bar[7] + 2, bar[9] - 4)
    HWs, HFs = tA, tB
    adr = [f"v_and_b32 v28, 15, v0", f"v_lshrrev_b32 v29, 4, v0", f"s_lshl_b32 {tA}, {sW}, 5", f"v_add_u32 v28, {tA}, v28",
           f"v_mul_u32_u24 v17, 296, v28", f"v_mul_u32_u24 v30, 72, v29", f"v_add3_u32 v17, v17, v30, {sFP}",
           f"v_mul_u32_u24 v18, 104, v28", f"v_lshl_add_u32 v18, v29, 3, v18", f"v_add_u32 v18, {VIMG}, v18"]
    adr.insert(0, f"s_mov_b32 {sFP}, {S3}")
    adr += [f"v_lshrrev_b32 v28, 2, v0", f"v_and_b32 v29, 3, v0",
            f"s_lshr_b32 {tA}, {sW}, 1", f"s_and_b32 {tB}, {sW}, 1",
            f"v_mul_u32_u24 v20, 296, v28", f"s_mul_i32 s40, {tA}, 72", f"s_lshl_b32 s41, {tB}, 3", f"s_add_u32 s40, s40, s41",
            f"s_add_u32 s40, s40, {S3 + 144}", f"v_lshl_add_u32 v19, v29, 4, v20", f"v_add_u32 v19, s40, v19",
            f"v_and_b32 v30, 1, v29", f"v_mul_u32_u24 v30, 72, v30", f"v_add_u32 v20, v20, v30", f"v_add_u32 v20, {S3 + 208}, v20",
            f"v_mul_u32_u24 v21, 104, v28", f"v_lshl_add_u32 v21, v29, 3, v21", f"s_lshl_b32 s40, {tA}, 5", f"s_add_u32 s40, s40, {VIMG}",
            [f"s_mov_b32 s41, {VIMG + 64}", f"s_cmp_eq_u32 {tB}, 0", f"s_cselect_b32 s42, s40, s41", f"s_cselect_b32 s43, s41, s40"],
            f"v_add_u32 v22, s43, v21", f"v_add_u32 v21, s42, v21"]
    def xsel(h, i): return 0 if i == h else 1 if i == 4 * h + 2 else 2 if i == 4 * h + 3 else None
    adr += [f"s_lshl_b32 s40, {sJ}, 2", f"s_add_u32 s40, s40, {sW}", f"s_lshl_b32 s40, s40, 4", f"s_add_u32 s40, s40, {sM}",
            f"s_lshl_b32 s41, s40, 9", f"s_add_u32 s41, s41, {KVC}", f"s_lshl_b32 s40, s40, 10", f"s_add_u32 s40, s40, {KV1}",
            f"v_add_u32 v23, s40, v1",
            f"v_and_b32 v28, 3, v0", f"v_subrev_u32 v28, 1, v28", f"v_max_i32 v28, 0, v28", f"v_lshrrev_b32 v29, 4, v0",
            f"v_mad_u32_u24 v28, v29, 3, v28", f"v_lshl_add_u32 v28, v28, 4, s41", f"v_mov_b32 v30, {OOB}",
            [f"s_cmp_lt_u32 {sW}, 2"] + setmask("s[42:43]", lanemask(lambda l: xsel(1, l & 15) is not None))
            + setmask("s[42:43]", lanemask(lambda l: xsel(0, l & 15) is not None), "s_cmov_b32"),
            f"v_cndmask_b32 v24, v30, v28, s[42:43]",
            f"v_add_u32 v28, 192, v28", f"v_and_b32 v29, 15, v0", f"v_lshl_add_u32 v29, v29, 4, s41", f"v_add_u32 v29, 192, v29",
            [f"s_mov_b64 s[42:43], 0", f"s_cmp_eq_u32 {sW}, 1"]
            + setmask("s[42:43]", lanemask(lambda l: l < 32 and xsel(l >> 4, l & 15) is not None), "s_cmov_b32"),
            f"v_cndmask_b32 v25, v30, v28, s[42:43]",
            [f"s_mov_b64 s[42:43], 0", f"s_cmp_eq_u32 {sW}, 0", "s_cmov_b32 s42, 0xffff", f"s_cmp_eq_u32 {sW}, 2", "s_cmov_b32 s42, 0xffff0000"],
            f"v_cndmask_b32 v25, v25, v29, s[42:43]",
            [f"s_bitcmp1_b32 {sW}, 0", "s_cselect_b64 s[42:43], -1, 0"],
            f"v_cndmask_b32 v28, v23, v24, s[42:43]", f"v_cndmask_b32 v24, v24, v23, s[42:43]", f"v_mov_b32 v23, v28"]
    SA.spread(adr, bar[7] + 3, bar[8] + 40)
    hst = []
    sq = Seq(tA)
    for k in range(9):
        g0 = 104 + 16 * k
        its = []
        for tt in range(2):
            src = [g0 + 4 * tt, g0 + 4 * tt + 2, g0 + 8 + 4 * tt, g0 + 10 + 4 * tt]
            its += [f"v_cvt_pk_bf16_f32 v{g0 + 4 * tt + q}, v{src[q]}, v{src[q] + 1}" for q in range(4)]
            its += [f"v_pk_max_i16 v{g0 + 4 * tt + q}, v{g0 + 4 * tt + q}, 0" for q in range(4)]
            pre, so, lo = sq.at(sHO, (2 * k + tt) * 1024)
            s_ = I(f"buffer_store_dwordx4 {vr(g0 + 4 * tt)}, v1, {WS}, {so} offen{off(lo)} sc1"); hst.append(s_)
            its.append(pre + [s_])
        SA.spread(its, 624 + 10 * k, 634 + 10 * k)
    bn[12].deps += hst
    SA.after(bar[12] + 1, signal([f"s_lshl_b32 {sF}, {sM}, 2", f"s_add_u32 {sF}, {sF}, {sC}", f"s_lshl_b32 {sF}, {sF}, 5", f"s_add_u32 {sF}, {sF}, {sN}",
                                  f"s_lshl_b32 {sF}, {sF}, 2", f"s_add_u32 {sF}, {sF}, {F2}"]))

    pw = []

    def softmax(tt, EP):
        y = [TACC[f >> 2] + 4 * tt + (f & 3) for f in range(18)]
        L = [f"v_mul_f32 v28, {LOG2E:#x}, v{5 + tt}"]
        for op, d in (("max", 29), ("min", 30)):
            L.append(f"v_{op}3_f32 v{d}, v{y[0]}, v{y[1]}, v{y[2]}")
            for f in range(3, 17, 2): L.append(f"v_{op}3_f32 v{d}, v{d}, v{y[f]}, v{y[f + 1]}")
            L.append(f"v_{op}_f32 v{d}, v{d}, v{y[17]}")
        L += ["v_mul_f32 v29, v29, v28", "v_mul_f32 v30, v30, v28"]
        for f in range(18):
            L += [f"v_fma_f32 v{EP[f]}, v{y[f]}, v28, -v29", f"v_fma_f32 v{y[f]}, -v{y[f]}, v28, v30"]
        for f in range(18):
            L += [f"v_exp_f32 v{EP[f]}, v{EP[f]}", f"v_exp_f32 v{y[f]}, v{y[f]}"]
        L += [f"v_add_f32 v29, v{EP[0]}, v{EP[1]}", f"v_add_f32 v30, v{y[0]}, v{y[1]}"]
        for f in range(2, 18): L += [f"v_add_f32 v29, v29, v{EP[f]}", f"v_add_f32 v30, v30, v{y[f]}"]
        L += ["v_rcp_f32 v29, v29", "v_rcp_f32 v30, v30"]
        for f in range(18): L += [f"v_mul_f32 v{EP[f]}, v29, v{EP[f]}", f"v_mul_f32 v{y[f]}, v30, v{y[f]}"]
        for q in range(18):
            src = [EP[2 * q], EP[2 * q + 1]] if q < 9 else [y[2 * q - 18], y[2 * q - 17]]
            L.append(f"v_cvt_pk_bf16_f32 v{EP[q]}, v{src[0]}, v{src[1]}")
            if q & 1:
                w_ = I(f"ds_write_b64 v17, {vr(EP[q - 1], 2)}{off(4 * (q - 1) + 4736 * tt)}"); pw.append(w_); L.append(w_)
        return L
    EP0 = list(range(192, 200)) + list(range(208, 216)) + [224, 225]
    SA.spread(softmax(0, EP0), 832, 900)
    SA.emit(P)
    A(stamp("A_end"))
    A(softmax(1, list(range(32, 50))))
    fl2 = f"buffer_load_dword v31, v26, {WS}, {sFP} offen sc1"
    A(f"""v_and_b32 v26, 3, v0
          v_lshlrev_b32 v26, 2, v26
          s_lshl_b32 {sFP}, {sM}, 2
          s_add_u32 {sFP}, {sFP}, {sC}
          s_lshl_b32 {sFP}, {sFP}, 7
          s_add_u32 {sFP}, {sFP}, {F2}""")
    for tt in range(2):
        for x, src in enumerate((160, 176)):
            b = src + 4 * tt
            for r in range(4): A(f"v_mul_f32 v{b + r}, v{5 + tt}, v{b + r}")
            A(f"v_cvt_pk_bf16_f32 v{b}, v{b}, v{b + 1}\n v_cvt_pk_bf16_f32 v{b + 1}, v{b + 2}, v{b + 3}")
            pw.append(A(f"ds_write_b64 v18, {vr(b, 2)}{off(32 * x + 1664 * tt)}"))
        b = 146 + 4 * tt
        A(f"""v_mul_f32 v{b}, v{5 + tt}, v{b}
              v_mul_f32 v{b + 1}, v{5 + tt}, v{b + 1}
              v_cvt_pk_bf16_f32 v{b + 1}, v{b}, v{b + 1}
              v_mov_b32 v{b}, 0x3f803f80""")
        pw.append(A(f"ds_write_b64 v18, {vr(b, 2)}{off(64 + 1664 * tt)}"))
    A(need(pw, dma_of[13]))
    A("s_barrier")
    A(stamp("X"))
    A(fl2)
    d15 = dma_items(15)
    for k in range(4):
        for u, va in enumerate(("v19", "v21", "v22", "v20")):
            pitch = 296 if va in ("v19", "v20") else 104
            for h in range(2):
                A(f"ds_read_b64_tr_b16 {vr(32 + 16 * k + 4 * u + 2 * h, 2)}, {va}{off((32 * k + 16 * h) * pitch)}")
        A(d15[2 * k]); A(d15[2 * k + 1])
    A(d15[8])
    for k in range(4):
        b = 32 + 16 * k
        A(mf(vr(8), vr(b), vr(b + 4), vr(8) if k else 0))
        A(mf(vr(12), vr(b), vr(b + 8), vr(12) if k else 0))
        A(mf(vr(248), vr(b + 12), vr(b + 4), vr(248) if k else 0))
    A(check(fl2, CMPF, 2))
    kvs = [A(f"buffer_store_dwordx4 {vr(d)}, {va}, {WS}, 0 offen sc1") for d, va in ((8, "v23"), (12, "v24"), (248, "v25"))]
    A(stamp("kv"))

    HBk = lambda k, tt: vr(104 + 16 * k + 4 * tt) if k < 9 else ar(8 * ((k - 9) % 11) + 4 * tt)
    fr = []
    for u in range(9):
        for f in range(36):
            k, T = 4 * u + f // 9, f % 9
            acc = 32 + 8 * T
            mm = lambda a, acc=acc, k=k: [mf(vr(acc + 4 * tt), a, HBk(k, tt), vr(acc + 4 * tt) if k else 0) for tt in range(2)]
            fr.append((13 + u, f == 0, b128((13 + u) % 3, f), mm))
    SB, bar, bn = gemm(fr, opt.get("laB", 3), 4, 88, first_barrier=False)
    for St in range(14, 20):
        for d, it in enumerate(dma_items(St + 2)): SB.after(bar[St] + dstart + dstep * d, it)
    for St in range(14, 22): bn[St].deps += dma_of[St]
    sq = Seq(tA)
    for k in range(9, 36):
        for tt in range(2):
            pre, so, lo = sq.at(sHR[k // 9], (2 * (k % 9) + tt) * 1024)
            it = pre + [I(f"buffer_load_dwordx4 {HBk(k, tt)}, v1, {WS}, {so} offen{off(lo)} sc1")]
            SB.after(1 + 3 * (2 * (k - 9) + tt) if k < 20 else 18 * (k - 11) + 18 + 6 * tt, it)
    bn[14].deps += kvs
    SB.after(bar[14] + 1, signal([f"s_lshl_b32 {sF}, {sJ}, 5", f"s_add_u32 {sF}, {sF}, {sM}", f"s_lshl_b32 {sF}, {sF}, 2", f"s_add_u32 {sF}, {sF}, {F3}"]))
    def val(h, i): return (i & 3) == h or i in (4 * h + 2, 4 * h + 3)
    adr = [f"v_and_b32 v26, 15, v0", f"v_lshrrev_b32 v29, 4, v0",
           f"s_lshl_b32 {tB}, {sW}, 5", f"v_add_u32 v28, {tB}, v26", f"v_mul_u32_u24 v28, 296, v28", f"v_add_u32 v28, {S3}, v28",
           f"v_lshl_add_u32 v13, v29, 4, v28", f"v_and_b32 v30, 1, v29", f"v_mul_u32_u24 v30, 72, v30", f"v_add3_u32 v14, v28, v30, 64",
           f"v_and_b32 v28, 3, v0", f"v_subrev_u32 v28, 1, v28", f"v_max_i32 v28, 0, v28", f"v_mad_u32_u24 v28, v29, 3, v28",
           f"v_lshlrev_b32 v28, 3, v28", f"v_add_u32 v28, {CB}, v28", f"v_mov_b32 v30, {CB + 31 * 8}",
           setmask("s[40:41]", lanemask(lambda l: val(0, l & 15))), f"v_cndmask_b32 v8, v30, v28, s[40:41]",
           setmask("s[42:43]", lanemask(lambda l: val(1, l & 15))), f"v_cndmask_b32 v9, v30, v28, s[42:43]",
           f"v_add_u32 v28, 96, v28",
           setmask("s[40:41]", lanemask(lambda l: l < 32 and val(l >> 4, l & 15))), f"v_cndmask_b32 v12, v30, v28, s[40:41]",
           f"v_lshlrev_b32 v28, 3, v26", f"v_add_u32 v28, {CB + 96}, v28",
           setmask("s[42:43]", 0xffff), f"v_cndmask_b32 v10, v30, v28, s[42:43]",
           setmask("s[40:41]", 0xffff0000), f"v_cndmask_b32 v11, v30, v28, s[40:41]",
           f"s_lshr_b32 s40, {sW}, 1", f"s_lshl_b32 s40, s40, 10", f"s_and_b32 s41, {sW}, 1", f"s_lshl_b32 s41, s41, 3", f"s_add_u32 s40, s40, s41",
           f"s_add_u32 s40, s40, {FA}", f"v_add_u32 v16, s40, v1", f"v_add_u32 v18, {FA}, v1",
           f"v_and_b32 v28, 31, v0", f"v_lshlrev_b32 v28, 3, v28", f"v_lshrrev_b32 v30, 5, v0", f"v_lshl_add_u32 v28, v30, 2, v28",
           f"s_lshl_b32 s40, {sW}, 8", f"s_add_u32 s40, s40, {CB}", f"v_add_u32 v17, s40, v28",
           f"s_bfe_u32 s40, {sJ}, 0x20001", f"s_lshl_b32 s40, s40, 8", f"s_and_b32 s41, {sJ}, 1", f"s_lshl_b32 s41, s41, 3", f"s_add_u32 s40, s40, s41",
           f"v_lshlrev_b32 v28, 4, v26", f"v_lshl_add_u32 v28, v29, 2, v28", f"v_add_u32 v28, s40, v28", f"v_cmp_gt_u32 vcc, 32, v0",
           f"v_cndmask_b32 v15, {OOB}, v28, vcc",
           f"v_add_u32 v19, {S3}, v1", f"s_and_b32 s41, {sW}, 1", f"s_mul_i32 s40, s41, 18432", f"v_add_u32 v20, s40, v19",
           f"v_mul_u32_u24 v28, 1152, v26", f"v_lshl_add_u32 v21, v29, 4, v28", f"v_lshl_add_u32 v22, v29, 3, v28",
           [f"s_cmp_lt_u32 {sW}, 2", f"s_cselect_b32 s40, 0, {OOB}"], f"v_add_u32 v22, s40, v22",
           f"s_lshl_b32 s40, {sM}, 2", f"s_add_u32 s40, s40, {sC}", f"s_mul_i32 s40, s40, {32 * 1152}", f"s_mul_i32 s42, {sN}, 288", f"s_add_u32 s40, s40, s42",
           f"s_lshl_b32 s42, {sW}, 6", f"s_add_u32 {sOUT}, s40, s42", f"s_mul_i32 s41, s41, 18432", f"s_add_u32 s40, s40, s41", f"s_add_u32 {sOUT8}, s40, 256",
           f"v_cmp_eq_u32 vcc, 0, v0", f"v_mov_b32 v25, {OOB}", f"v_cndmask_b32 v25, v25, 0, vcc",
           f"v_lshlrev_b32 v26, 2, v26", f"s_lshl_b32 {sFP}, {sJ}, 7", f"s_add_u32 {sFP}, {sFP}, {F3}"]
    SB.spread(adr, bar[14] + 3, bar[15] - 2)
    fl = f"buffer_load_dword v31, v26, {WS}, {sFP} offen sc1"
    SB.after(bar[15] + 1, fl)
    SB.after(bar[16] - 1, check(fl, CMPF, 3))
    gl = [[I(f"s_lshl_b32 {tB}, {sJ}, 2"), I(f"s_add_u32 {tB}, {tB}, {sW}"), I(f"s_lshl_b32 {tD}, {tB}, 13"), I(f"s_lshl_b32 {tB}, {tB}, 14"),
           I(f"s_add_u32 {tB}, {tB}, {KV1}"), I(f"s_add_u32 {tD}, {tD}, {KVC}")]]
    sq = Seq(tC_)
    for q in range(24):
        pre, so, lo = sq.at(tB, q * 1024) if q < 16 else sq.at(tD, (q - 16) * 1024)
        gl.append(pre + [I(f"buffer_load_dwordx4 {vr(104 + 4 * q)}, v1, {WS}, {so} offen{off(lo)} sc1")])
    SB.spread(gl, bar[16] + 1, bar[16] + 50)
    ad = []
    for q in range(1, 16): ad += [f"v_add_f32 v{104 + r}, v{104 + r}, v{104 + 4 * q + r}" for r in range(4)]
    for q in range(1, 8): ad += [f"v_add_f32 v{168 + r}, v{168 + r}, v{168 + 4 * q + r}" for r in range(4)]
    faw = [I("ds_write_b64 v16, v[104:105]"), I("ds_write_b32 v17, v168")]
    ad += ["v_cvt_pk_bf16_f32 v104, v104, v105", "v_cvt_pk_bf16_f32 v105, v106, v107", faw[0],
           "v_permlane32_swap_b32 v168, v170", "v_permlane32_swap_b32 v169, v171",
           setmask("s[40:41]", lanemask(lambda l: (l & 31) != 31)),
           "v_add_f32 v168, v168, v170", "v_add_f32 v169, v169, v171", "v_cvt_pk_bf16_f32 v168, v168, v169",
           "v_cndmask_b32 v168, 0, v168, s[40:41]", faw[1]]
    SB.spread(ad, bar[17] + 1, bar[18] - 4)
    bn[18].deps += faw
    o1 = [f"ds_read_b128 {vr(104)}, v18", f"ds_read_b128 {vr(108)}, v18 offset:1024",
          f"ds_read_b64 {vr(112, 2)}, v8", f"ds_read_b64 {vr(114, 2)}, v8 offset:256",
          f"ds_read_b64 {vr(116, 2)}, v9 offset:512", f"ds_read_b64 {vr(118, 2)}, v9 offset:768",
          f"ds_read_b64 {vr(120, 2)}, v10", f"ds_read_b64 {vr(122, 2)}, v11 offset:512", f"ds_read_b64 {vr(124, 2)}, v12 offset:256"]
    o2, o3, ost = [], [], []
    m16 = lambda d, a, b: f"v_mfma_f32_16x16x16_bf16 {vr(d)}, {vr(a, 2)}, {vr(b, 2)}, {vr(d)}"
    for tt in range(2):
        b = 128 + 10 * tt; t = 152 + 12 * tt
        o1 += [f"ds_read_b64 {vr(b + 2 * q, 2)}, v13{off((0, 8, 72, 80)[q] + 4736 * tt)}" for q in range(4)]
        o1 += [f"ds_read_b64 {vr(b + 8, 2)}, v14{off(4736 * tt)}"]
        o2.append([mf(vr(t + 8), vr(112), vr(b), 0), mf(vr(t), vr(104), vr(b), 0), mf(vr(t + 4), vr(108), vr(b + 4), 0),
                   mf(vr(t + 8), vr(116), vr(b + 4), vr(t + 8)), m16(t, 120, b + 8), m16(t + 4, 122, b + 8), m16(t + 8, 124, b + 8)])
        pre = []
        if tt == 0:
            pre = [f"s_lshl_b32 {tB}, {sM}, 2", f"s_add_u32 {tB}, {tB}, {sW}", f"s_mul_i32 {tB}, {tB}, {SLOT}", f"s_add_u32 {tB}, {tB}, {OB}",
                   f"s_lshr_b32 {tD}, {sJ}, 3", f"s_add_u32 {tD}, {tD}, 16", f"s_lshl_b32 {tD}, {tD}, 10", f"s_add_u32 {tD}, {tD}, {tB}",
                   f"s_lshl_b32 {tC_}, {sJ}, 10", f"s_add_u32 {tB}, {tB}, {tC_}", setmask("s[40:41]", 0xffff)]
        else:
            pre = [f"s_add_u32 {tB}, {tB}, 18432", f"s_add_u32 {tD}, {tD}, 18432"]
        s1 = I(f"buffer_store_dwordx4 {vr(t)}, v1, {WS}, {tB} offen sc1")
        s2 = I(f"buffer_store_dword v{t + 10}, v15, {WS}, {tD} offen sc1")
        ost += [s1, s2]
        o3 += pre + [f"v_add_f32 v{t + 8}, 0x358637bd, v{t + 8}", f"v_add_f32 v{t + 9}, 0x358637bd, v{t + 9}",
                     f"v_rcp_f32 v{t + 8}, v{t + 8}", f"v_rcp_f32 v{t + 9}, v{t + 9}"]
        o3 += [f"v_mul_f32 v{t + r}, v{t + 8 + (r >> 2)}, v{t + r}" for r in range(8)]
        o3 += [f"v_cndmask_b32 v{t + 8}, v{t + 9}, v{t + 8}, s[40:41]"]
        o3 += [f"v_cvt_pk_bf16_f32 v{t + q}, v{t + 2 * q}, v{t + 2 * q + 1}" for q in range(4)]
        o3 += [f"v_mul_f32 v{t + 10}, v{t + 8}, v{t + 10}", f"v_mul_f32 v{t + 11}, v{t + 8}, v{t + 11}", s1,
               f"v_cvt_pk_bf16_f32 v{t + 10}, v{t + 10}, v{t + 11}", s2]
    p = bar[18]
    SB.spread(o1, p + 1, p + 14)
    SB.spread([x for pair in zip(o2[0], o2[1]) for x in pair], p + 16, p + 36)
    SB.spread(o3, p + 40, p + 70)
    bn[20].deps += ost
    SB.after(bar[20] + 1, signal([f"s_lshl_b32 {sF}, {sM}, 5", f"s_add_u32 {sF}, {sF}, {sJ}", f"s_lshl_b32 {sF}, {sF}, 2", f"s_add_u32 {sF}, {sF}, {F4}"]))
    t8 = []
    for k in range(18):
        t8.append([I(f"s_add_u32 {tB}, {sWO}, {k * 9216 + 8192}"), I(f"buffer_load_dwordx4 {vr(104 + 4 * k)}, v1, {WS}, {tB} offen sc1")])
    t8 += [f"buffer_load_dwordx4 {vr(224)}, v21, {X}, {sOUT} offen", [f"s_add_u32 {tB}, {sOUT}, 18432", f"buffer_load_dwordx4 {vr(228)}, v21, {X}, {tB} offen"],
           f"buffer_load_dwordx2 {vr(232, 2)}, v22, {X}, {sOUT8} offen"]
    SB.spread(t8, bar[19] + 44, bar[20] + 30)
    misc = [f"s_lshl_b32 s40, {sC}, 7", f"s_add_u32 s40, s40, {RSH}", f"v_add_u32 v23, s40, v26", f"s_and_b32 s41, {sW}, 1", f"s_lshl_b32 s40, s41, 6",
            f"v_add_u32 v24, s40, v23", "ds_read_b32 v234, v23", "ds_read_b32 v235, v23 offset:64", "ds_read_b32 v236, v24",
            "v_accvgpr_read_b32 v28, a250", "v_accvgpr_read_b32 v29, a251", [f"s_cmp_eq_u32 s41, 0", "s_cselect_b64 s[42:43], -1, 0"],
            "v_cndmask_b32 v220, 0, v28, s[42:43]", "v_cndmask_b32 v221, 0, v29, s[42:43]",
            "v_cndmask_b32 v222, v28, 0, s[42:43]", "v_cndmask_b32 v223, v29, 0, s[42:43]",
            f"v_mul_f32 v237, 0xbfb8aa3b, v234", f"v_mul_f32 v238, 0xbfb8aa3b, v235", f"v_mul_f32 v239, 0xbfb8aa3b, v236",
            f"s_lshl_b32 {sFP}, {sM}, 7", f"s_add_u32 {sFP}, {sFP}, {F4}"]
    SB.spread(misc, bar[20] + 3, bar[20] + 40)
    fl = f"buffer_load_dword v31, v26, {WS}, {sFP} offen sc1"
    SB.after(bar[21] - opt.get("f4lead", 16), fl)
    SB.after(bar[21] + opt.get("f4chk", 2), check(fl, CMPF, 4))
    sq = Seq(tC_)
    od = []; odi = [[I(f"s_lshl_b32 {tB}, {sM}, 2"), I(f"s_add_u32 {tB}, {tB}, {sC}"), I(f"s_mul_i32 {tB}, {tB}, {SLOT}"),
                     I(f"s_add_u32 {tB}, {tB}, {OB}"), I(f"s_add_u32 {tB}, {tB}, {sLW}")]]
    for d in range(9):
        pre, so, lo = sq.at(tB, d * 1024)
        i = I(f"buffer_load_dwordx4 v1, {WS}, {so} offen{off(lo)} sc1 lds", m0=(sLW, S3 + d * 1024 - lo)); od.append(i)
        odi.append(pre + [i])
    SB.spread(odi, bar[21] + opt.get("f4chk", 2) + 1, bar[21] + opt.get("f4chk", 2) + 21)
    pst = []
    SB.after(600, f"s_lshl_b32 {tD}, {sM}, 2", f"s_add_u32 {tD}, {tD}, {sN}", f"s_lshl_b32 {tD}, {tD}, 2",
             f"s_add_u32 {sF}, {tD}, {sW}", f"s_add_u32 {sFP}, {tD}, {sC}",
             f"s_lshl_b32 {tA}, {sF}, 2", f"s_add_u32 {tA}, {tA}, {sC}", f"s_mul_i32 {tA}, {tA}, 9216", f"s_add_u32 {tA}, {tA}, {PART}",
             f"s_mul_i32 {tD}, {sFP}, {SLOT}", f"s_add_u32 {tD}, {tD}, {PART}",
             f"s_lshl_b32 {sF}, {sF}, 5", f"s_add_u32 {sF}, {sF}, {sC}", f"s_lshl_b32 {sF}, {sF}, 2", f"s_add_u32 {sF}, {sF}, {F5}",
             f"s_lshl_b32 {sFP}, {sFP}, 7", f"s_add_u32 {sFP}, {sFP}, {F5}", "v_and_b32 v26, 12, v26")
    sq = Seq(tC_)
    late = []
    for T in range(9):
        b = 32 + 8 * T
        its = [f"v_cvt_pk_bf16_f32 v{b + q}, v{b + 2 * q}, v{b + 2 * q + 1}" for q in range(4)]
        pre, so, lo = sq.at(tA, T * 1024)
        s_ = I(f"buffer_store_dwordx4 {vr(b)}, v1, {WS}, {so} offen{off(lo)} sc1"); pst.append(s_)
        q0 = 2 * (315 + T) + 5
        if q0 + 1 <= 647:
            SB.after(q0, its[:3]); SB.after(q0 + 1, its[3:], pre + [s_])
        else: late.append(its + pre + [s_])
    SB.emit(P)
    for x in late: A(x)
    A(stamp("B_end"))
    A(need(od))
    A("s_barrier")

    ST = Stream()
    NBK = 4
    for k in range(18):
        r = 12 * (k % NBK)
        for tt in range(2):
            for x in range(2):
                d = 176 + 8 * tt + 4 * x
                ST.mfma(mf(vr(d), ar(104 + 72 * x + 4 * k), ar(r + 4 * tt), vr(d) if k else 0))
        ST.mfma(mf(vr(192), vr(104 + 4 * k), ar(r + 8), vr(192) if k else 0))
    for k in range(18):
        r = 12 * (k % NBK); pos = 5 * (k - (NBK - 1))
        rs = [f"ds_read_b128 {ar(r)}, v19{off(k * 1024)}", f"ds_read_b128 {ar(r + 4)}, v19{off(18432 + k * 1024)}", f"ds_read_b128 {ar(r + 8)}, v20{off(k * 1024)}"]
        for q, t in enumerate(rs): ST.after(pos + q if pos >= 0 else -1, t)
    ST.after(opt.get("f5sig", 30), need(pst), f"buffer_store_dword v7, v25, {WS}, {sF} offen sc1")
    fl = f"buffer_load_dword v31, v26, {WS}, {sFP} offen sc1"
    ST.after(opt.get("f5ld", 80), fl)
    ST.emit(P)
    A(stamp("s_end"))
    A(check(fl, CMPF, 5))
    A(f"s_lshl_b32 {tA}, {sW}, 11\n s_add_u32 {tA}, {tA}, {tD}")
    for cp in range(4):
        A(f"s_add_u32 {tB}, {tA}, {cp * 9216}\n s_add_u32 {tC_}, {tD}, {cp * 9216 + 8192}")
        for x in range(2): A(f"buffer_load_dwordx4 {vr(32 + 12 * cp + 4 * x)}, v1, {WS}, {tB} offen{off(1024 * x)} sc1")
        A(f"buffer_load_dwordx4 {vr(40 + 12 * cp)}, v1, {WS}, {tC_} offen sc1")
    for cp in range(4):
        for tt in range(2):
            for x in range(2):
                d = 200 + 8 * tt + 4 * x
                A(mf(vr(d), SEL[tt], vr(32 + 12 * cp + 4 * x), vr(d) if cp else 0))
        A(mf(vr(216), vr(220), vr(40 + 12 * cp), vr(216) if cp else 0))
    A(stamp("sum"))

    def gate(F, Sa, XR, n, rs, tmp):
        for e in range(n): A(f"v_mul_f32 v{tmp + e}, v{rs + 3}, v{F + e}")
        for e in range(n): A(f"v_exp_f32 v{tmp + e}, v{tmp + e}")
        for e in range(n): A(f"v_mul_f32 v{F + e}, v{rs}, v{F + e}")
        for e in range(n): A(f"v_add_f32 v{tmp + e}, 1.0, v{tmp + e}")
        for e in range(n): A(f"v_rcp_f32 v{tmp + e}, v{tmp + e}")
        for e in range(n): A(f"v_mul_f32 v{F + e}, v{Sa + e}, v{F + e}")
        for e in range(n):
            A(f"v_lshlrev_b32 v{Sa + e}, 16, v{XR + e // 2}" if e % 2 == 0 else f"v_and_b32 v{Sa + e}, 0xffff0000, v{XR + e // 2}")
        for e in range(n): A(f"v_fma_f32 v{F + e}, v{F + e}, v{tmp + e}, v{Sa + e}")
        for q in range(n // 2): A(f"v_cvt_pk_bf16_f32 v{XR + q}, v{F + 2 * q}, v{F + 2 * q + 1}")
    gate(200, 176, 224, 8, 234, 80)
    A(f"buffer_store_dwordx4 {vr(224)}, v21, {OUT}, {sOUT} offen")
    gate(208, 184, 228, 8, 235, 88)
    A(f"s_add_u32 {tB}, {sOUT}, 18432")
    A(f"buffer_store_dwordx4 {vr(228)}, v21, {OUT}, {tB} offen")
    gate(216, 192, 232, 4, 236, 96)
    A(f"buffer_store_dwordx2 {vr(232, 2)}, v22, {OUT}, {sOUT8} offen")
    if opt.get("stamps"):
        A(stamp("end"))
        for k in range(len(stamps)): A(f"v_writelane_b32 v255, s{SREG[k]}, {k}")
        A(f"""s_lshl_b32 s40, s2, 2
              s_add_u32 s40, s40, {sW}
              s_lshl_b32 s40, s40, 8
              s_add_u32 s40, s40, {STAMP}
              v_lshlrev_b32 v0, 2, v0
              buffer_store_dword v255, v0, {WS}, s40 offen""")
    A("L_end:")
    return finalize(P, verbose=opt.get("verbose", True)), stamps


HEAD = open(os.path.join(os.path.dirname(os.path.abspath(__file__)), "..", "cdna_kernels", KN + ".s.ref")).read().split("; Override launch")[0]


def wrap(body):
    return f"""{HEAD}; One launch, 256 workgroups (one per CU); hand-offs between workgroups go through d_ws.
; @launch grid=(256,1,1) block=(256,1,1) lds=163840
.amdgcn_target "amdgcn-amd-amdhsa--gfx950"
.text
.globl {KN}_kernel
.p2align 8
.type {KN}_kernel,@function
{KN}_kernel:
{body}
s_endpgm
.section .rodata,"a"
.p2align 6
.amdhsa_kernel {KN}_kernel
  .amdhsa_next_free_vgpr 512
  .amdhsa_next_free_sgpr 102
  .amdhsa_accum_offset 256
  .amdhsa_group_segment_fixed_size 0
  .amdhsa_kernarg_size 80
  .amdhsa_user_sgpr_count 2
  .amdhsa_user_sgpr_kernarg_segment_ptr 1
  .amdhsa_system_sgpr_workgroup_id_x 1
.end_amdhsa_kernel
"""


if __name__ == "__main__":
    import json
    out = sys.argv[1]
    opt = {}
    for a in sys.argv[2:]:
        k, v = a.split("="); opt[k] = int(v)
    body, stamps = build(opt)
    open(out, "w").write(wrap(body))
    json.dump(stamps, open(out + ".json", "w"))
```

```python
import re

REG_RE = re.compile(r"\b([vas])\[(\d+):(\d+)\]|\b([vas])(\d+)\b|\b(vcc|exec|m0|scc)\b")
TRANS = ("v_exp_f32", "v_log_f32", "v_rcp_f32", "v_rsq_f32", "v_sqrt_f32", "v_sin_f32", "v_cos_f32")


def regs_of(s):
    out = []
    for m in REG_RE.finditer(s):
        if m.group(1):
            out += [f"{m.group(1)}{i}" for i in range(int(m.group(2)), int(m.group(3)) + 1)]
        elif m.group(4):
            out.append(m.group(4) + m.group(5))
        else:
            out.append(m.group(6))
    return out


class I:
    __slots__ = ("text", "op", "kind", "rd", "wr", "deps", "m0", "blk", "srcc", "ab", "done", "note", "wide")

    def __init__(self, text, deps=None, m0=None, note=None):
        self.text = text
        self.deps = list(deps) if deps else []
        self.m0 = m0
        self.blk = None
        self.srcc = ()
        self.ab = ()
        self.done = False
        self.note = note
        self.wide = False
        t = text.strip()
        op = t.split()[0] if t else ""
        self.op = op
        rest = t[len(op):]
        ops = [x.strip() for x in rest.split(",")] if rest.strip() else []
        rd, wr = [], []
        if t.endswith(":") or op.startswith(".") or op.startswith(";") or op == "@begin" or op == "@end" or op == "@need":
            k = "label" if t.endswith(":") else "meta"
        elif op.startswith("v_mfma"):
            k = "mfma"
            wr = regs_of(ops[0]); self.ab = tuple(regs_of(ops[1]) + regs_of(ops[2])); self.srcc = tuple(regs_of(ops[3]))
            rd = list(self.ab) + list(self.srcc)
        elif op.startswith("v_"):
            k = "trans" if op.startswith(TRANS) else "valu"
            wr = regs_of(ops[0]); rd = regs_of(",".join(ops[1:]))
            if op.startswith(("v_fmac", "v_dot2c", "v_writelane")): rd += wr
            if op.startswith("v_permlane"):
                wr = regs_of(ops[0]) + regs_of(ops[1]); rd = list(wr)
            if op.startswith(("v_add_co", "v_sub_co", "v_addc_co")):
                wr = regs_of(ops[0]) + regs_of(ops[1]); rd = regs_of(",".join(ops[2:]))
        elif op.startswith("ds_read"):
            k = "ds_rd"; wr = regs_of(ops[0]); rd = regs_of(",".join(ops[1:]))
        elif op.startswith("ds_bpermute"):
            k = "ds_rd"; wr = regs_of(ops[0]); rd = regs_of(",".join(ops[1:]))
        elif op.startswith("ds_write"):
            k = "ds_wr"; rd = regs_of(rest)
        elif op.startswith(("buffer_load", "global_load")):
            if re.search(r"\blds\b", rest):
                k = "dma"; rd = regs_of(rest) + ["m0"]
            else:
                k = "vm_ld"; wr = regs_of(ops[0]); rd = regs_of(",".join(ops[1:]))
        elif op.startswith(("buffer_store", "global_store", "buffer_atomic")):
            k = "vm_st"; rd = regs_of(rest); self.wide = op.endswith(("x3", "x4"))
        elif op == "s_waitcnt": k = "wait"
        elif op == "s_barrier": k = "barrier"
        elif op == "s_nop": k = "nop"
        elif op.startswith(("s_cbranch", "s_branch")):
            k = "branch"
        elif op.startswith(("s_load", "s_buffer_load", "s_memtime", "s_memrealtime")):
            k = "smem"; wr = regs_of(ops[0]); rd = regs_of(",".join(ops[1:]))
        elif op.startswith(("s_cmp", "s_bitcmp")):
            k = "salu"; rd = regs_of(rest); wr = ["scc"]
        elif op in ("s_sleep", "s_endpgm", "s_setprio"):
            k = "salu"
        elif op.startswith("s_"):
            k = "salu"; wr = regs_of(ops[0]); rd = regs_of(",".join(ops[1:]))
            if "saveexec" in op: wr += ["exec"]; rd += ["exec"]
        else:
            raise ValueError("unknown op: " + text)
        self.kind = k
        self.rd = tuple(rd); self.wr = tuple(wr)

    def __repr__(self):
        return f"I({self.text})"


VM = ("vm_ld", "vm_st", "dma")
DS = ("ds_rd", "ds_wr")


def need(*toks):
    flat = []
    for t in toks:
        if isinstance(t, (list, tuple)): flat += list(t)
        else: flat.append(t)
    return I("@need", deps=flat)


class Prog:
    def __init__(self):
        self.L = []
        self.nblk = 0

    def add(self, x, **kw):
        if isinstance(x, str):
            for line in x.strip().split("\n"):
                line = line.strip()
                if line:
                    i = I(line, **kw); self.L.append(i)
            return self.L[-1]
        if isinstance(x, I):
            self.L.append(x); return x
        for y in x: self.add(y)
        return None

    def begin(self):
        self.L.append(I("@begin"))

    def end(self):
        self.L.append(I("@end"))


def mark_blocks(L):
    cur = None; n = 0
    for i in L:
        if i.op == "@begin":
            assert cur is None, "nested optional block"
            n += 1; cur = n; i.blk = cur
        elif i.op == "@end":
            i.blk = cur; cur = None
        else:
            i.blk = cur
    assert cur is None


def pass_m0(L):
    out = []; cur = None
    for i in L:
        if i.op in ("@begin", "@end") or i.kind == "label": cur = None
        if i.kind == "salu" and "m0" in i.wr: cur = i.m0
        if i.kind == "dma":
            assert i.m0 is not None, i.text
            if i.m0 != cur:
                sreg, c = i.m0
                assert c >= 0 or sreg is None
                w = I(f"s_add_u32 m0, {sreg}, {c}") if sreg else I(f"s_mov_b32 m0, {c}")
                w.blk = i.blk
                p = out[-1] if out else None
                if p is not None and p.kind in ("mfma", "valu", "ds_rd", "trans") and p.blk == i.blk and "scc" not in p.rd:
                    out.insert(len(out) - 1, w)
                else:
                    out.append(w)
                cur = i.m0
        out.append(i)
    return out


def pass_waits(L, verbose=False):
    out = []
    seq = {"vm": [], "ds": []}
    pend = {}
    smem = False
    snap = None
    cls_of = {}
    maxout = {"vm": 0, "ds": 0}

    def sure_after(cl, idx, blk):
        return sum(1 for o in seq[cl][idx + 1:] if o.blk is None or o.blk == blk)

    def apply(cl, n, blk):
        s = seq[cl]; cnt = 0
        for z in range(len(s) - 1, -1, -1):
            if cnt >= n: s[z].done = True
            if s[z].blk is None or s[z].blk == blk: cnt += 1

    for i in L:
        if i.op == "@begin":
            snap = {id(o): o.done for c in seq for o in seq[c]}
        elif i.op == "@end":
            for c in seq:
                for o in seq[c]:
                    if id(o) in snap: o.done = snap[id(o)]
            snap = None
        needs = list(i.deps)
        if i.kind not in ("meta", "label"):
            for r in set(i.rd) | set(i.wr):
                p = pend.get(r)
                if p is not None:
                    if p.kind == "smem":
                        if not p.done: raise RuntimeError("unwaited smem reg " + r + " in " + i.text)
                    else: needs.append(p)
        req = {}
        for p in needs:
            if p.done: continue
            cl = cls_of.get(id(p))
            assert cl is not None, f"dependency not yet issued: {p.text} needed by {i.text}"
            idx = seq[cl].index(p)
            n = sure_after(cl, idx, i.blk)
            req[cl] = min(req.get(cl, 999), n)
        if req:
            parts = []
            if "vm" in req:
                n = min(req["vm"], 62); parts.append(f"vmcnt({n})"); apply("vm", n, i.blk)
            if "ds" in req:
                n = 0 if smem else min(req["ds"], 14); parts.append(f"lgkmcnt({n})"); apply("ds", n, i.blk)
                if n == 0 and i.blk is None:
                    smem = False
                    for r, p in pend.items():
                        if p.kind == "smem": p.done = True
            w = I("s_waitcnt " + " ".join(parts)); w.blk = i.blk
            out.append(w)
        if i.kind == "wait":
            m = re.search(r"vmcnt\((\d+)\)", i.text)
            if m: apply("vm", int(m.group(1)), i.blk)
            m = re.search(r"lgkmcnt\((\d+)\)", i.text)
            if m:
                n = int(m.group(1))
                if n == 0:
                    smem = False
                    for r, p in pend.items():
                        if p.kind == "smem": p.done = True
                if n == 0 or not smem: apply("ds", n, i.blk)
        if i.kind in VM or i.kind in DS:
            cl = "vm" if i.kind in VM else "ds"
            i.done = False
            seq[cl].append(i); cls_of[id(i)] = cl
            s = seq[cl]
            if snap is None:
                k = 0
                while k < len(s) and s[k].done: k += 1
                if k > 200: del s[:k - 100]
            o = sum(1 for z in s if not z.done)
            maxout[cl] = max(maxout[cl], o)
        if i.kind == "smem": smem = True; i.done = False
        for r in i.wr:
            if i.kind in ("vm_ld", "ds_rd", "smem"): pend[r] = i
            elif r in pend: del pend[r]
        if i.op != "@need": out.append(i)
    if verbose: print("max outstanding (static):", maxout)
    return out


def passes_of(i):
    if "_f32_16x16x4_f32" in i.op: return ("sgemm", 8)
    if "32x32" in i.op: return ("xdl", 8)
    return ("xdl", 4)


def states(i):
    if i.kind in ("meta", "label"): return 0
    if i.kind == "nop": return int(i.text.split()[1]) + 1
    return 1


def required(p, c):
    n = 0
    crd, cwr = set(c.rd), set(c.wr)
    if p.kind == "mfma":
        cl, ps = passes_of(p)
        D = set(p.wr)
        late = {("xdl", 4): 8, ("xdl", 8): 12, ("sgemm", 8): 10}[(cl, ps)]
        if c.kind == "mfma":
            if D & set(c.ab): n = max(n, late)
            if D & set(c.srcc):
                ccl, cps = passes_of(c)
                if tuple(p.wr) == tuple(c.srcc) and p.op == c.op: pass
                elif cl == "sgemm" and ccl == "xdl": pass
                else: n = max(n, {("xdl", 4): 6, ("xdl", 8): 10, ("sgemm", 8): 8}[(cl, ps)])
            elif D & cwr: n = max(n, late)
        elif c.kind in ("valu", "trans", "ds_rd", "ds_wr", "vm_ld", "vm_st", "dma"):
            if D & (crd | cwr): n = max(n, late)
            if c.kind in ("valu", "trans") and cl == "xdl" and set(p.srcc) & cwr: n = max(n, 3 if ps == 4 else 7)
    if p.kind in ("valu", "trans"):
        W = set(p.wr)
        vw = {r for r in W if r[0] in "va" and r != "vcc"}
        sw = W - vw
        if c.kind == "mfma" and vw & crd: n = max(n, 2)
        if c.kind in ("valu", "trans"):
            if c.op.startswith(("v_readfirstlane", "v_readlane")) and vw & crd: n = max(n, 1)
            if (c.op.startswith("v_permlane") or "dpp" in c.text or "row_" in c.text or "quad_perm" in c.text) and vw & crd: n = max(n, 2)
            if sw & crd: n = max(n, 2)
            if "vcc" in sw and c.op.startswith("v_cndmask") and "s[" not in c.text: n = max(n, 2)
            if p.kind == "trans" and c.kind == "valu" and vw & crd: n = max(n, 1)
        if c.kind in VM and sw & crd: n = max(n, 5)
    if p.kind == "salu" and "m0" in p.wr and c.kind == "dma": n = max(n, 1)
    if p.kind == "vm_st" and p.wide:
        data = set(regs_of(p.text.split(",")[0]))
        if data & cwr: n = max(n, 2 if c.kind in ("valu", "trans") else 1)
    return n


def pass_hazards(L):
    nblk = max([i.blk or 0 for i in L] + [0])
    total = 0
    while True:
        extra = {}
        for skip in [None] + list(range(1, nblk + 1)):
            V = [(k, i) for k, i in enumerate(L) if skip is None or i.blk != skip]
            for x in range(len(V)):
                k, c = V[x]
                if c.kind in ("meta", "label", "nop", "wait", "barrier", "branch"): continue
                dist = 0; y = x - 1
                while y >= 0 and dist < 12:
                    p = V[y][1]
                    r = required(p, c)
                    if r > dist: extra[k] = max(extra.get(k, 0), r - dist)
                    dist += states(p); y -= 1
        if not extra: break
        out = []; last = -100
        for k, i in enumerate(L):
            if k in extra and k - last > 12:
                w = I(f"s_nop {extra[k] - 1}"); w.blk = i.blk; out.append(w); last = k; total += extra[k]
            out.append(i)
        L = out
    return L, total


def finalize(prog, verbose=True):
    L = prog.L
    mark_blocks(L)
    L = pass_m0(L)
    L = pass_waits(L, verbose)
    L, nn = pass_hazards(L)
    if verbose:
        from collections import Counter
        c = Counter(i.kind for i in L)
        print("instructions:", dict(c), "nop states:", nn)
        e = estimate(L)
        print("estimate (cycles/mfma/vm):", " ".join(f"{a}/{b}/{v}" for a, b, v in e), "total", sum(a for a, b, v in e))
    lines = []
    for i in L:
        if i.op in ("@begin", "@end"): continue
        lines.append(i.text if i.kind == "label" else "  " + i.text + (f"  ; {i.note}" if i.note else ""))
    return "\n".join(lines)


def estimate(L):
    out = []; t = 0; gap = None; n = 0; vm = 0
    for i in L:
        if i.kind in ("meta", "label") or i.blk: continue
        c = {"trans": 8, "nop": 4 * states(i)}.get(i.kind, 4)
        if i.kind == "mfma":
            if gap is not None: t += max(gap, full)
            gap = 8; full = 32 if "x4_f32" in i.op else 16; n += 1
        elif gap is not None: gap += c
        else: t += c
        if i.kind in VM: vm += 1
        if i.kind == "barrier":
            out.append((t, n, vm)); t = 0; n = 0; vm = 0
    out.append((t + (gap or 0), n, vm))
    return out


SCC_USE = ("s_cselect", "s_cmov", "s_cbranch_scc", "s_addc")


def atomize(src):
    flat = []
    def fl(x):
        if isinstance(x, str):
            for line in x.strip().split("\n"):
                if line.strip(): flat.append([I(line.strip())])
        elif isinstance(x, I): flat.append([x])
        elif isinstance(x, tuple): flat.append([I(y) if isinstance(y, str) else y for y in x])
        else:
            for y in x: fl(y)
    fl(src)
    out = []; k = 0
    while k < len(flat):
        e = k; q = k
        while q <= e:
            for z, i in enumerate(flat[q]):
                if i.op.startswith(("s_cmp", "s_bitcmp")):
                    for y in range(q + 1, len(flat)):
                        if any(o.op.startswith(SCC_USE) for o in flat[y]): e = max(e, y)
                        elif any(o.kind == "salu" and not o.op.startswith(("s_mov", "s_mul_i32")) for o in flat[y]): break
                if i.op.startswith("v_cmp") and "vcc" in i.wr:
                    for y in range(q + 1, len(flat)):
                        if any("vcc" in o.wr for o in flat[y]): break
                        if any("vcc" in o.rd for o in flat[y]): e = max(e, y)
            q += 1
        out.append([i for g in flat[k:e + 1] for i in g]); k = e + 1
    return out


class Stream:
    def __init__(self):
        self.mf = []; self.post = []; self.head = []; self.spill = []; self.virt = {}; self.m0 = None

    def mfma(self, text):
        self.mf.append(I(text)); self.post.append([]); return len(self.mf) - 1

    def after(self, pos, *items, front=False):
        tgt = self.head if pos < 0 else self.post[min(pos, len(self.mf) - 1)]
        flat = []
        for it in items:
            if isinstance(it, (list, tuple)): flat += [I(x) if isinstance(x, str) else x for x in it]
            else: flat.append(I(it) if isinstance(it, str) else it)
        if front: tgt[0:0] = flat
        else: tgt += flat
        return flat[-1] if flat else None

    def spread(self, items, lo, hi):
        n = len(items); span = hi - lo
        for k, it in enumerate(items):
            self.after(lo + (k * span) // max(n, 1), it)

    @staticmethod
    def weight(it):
        if isinstance(it, (list, tuple)): return sum(Stream.weight(x) for x in it)
        i = I(it) if isinstance(it, str) else it
        if i.kind in ("meta", "label"): return 0
        if i.kind == "mfma": return 4
        if i.kind == "trans": return 2
        if i.kind == "ds_wr": return 1.5
        return 1

    def load(self, p):
        p = min(p, len(self.mf) - 1)
        return self.weight(self.post[p]) + self.virt.get(p, 0)

    def fill(self, items, lo, hi):
        hi = min(hi, len(self.mf))
        base = [self.load(p) for p in range(lo, hi)]
        ws = [self.weight(x) for x in items]
        lvl = 0.5
        while True:
            p = 0; cur = list(base); pos = []
            for w in ws:
                while p < len(cur) and cur[p] + w > lvl + (w - 1 if w > 1 else 0): p += 1
                if p == len(cur): break
                cur[p] += w; pos.append(lo + p)
            if len(pos) == len(ws): break
            lvl += 0.25
        if pos and pos[-1] < lo + 0.7 * (hi - lo) and lvl <= 1.0 + max(base):
            free = [p for p in range(hi - lo) if base[p] + 1 <= lvl + 0.5] or list(range(hi - lo))
            pos = [lo + free[(k * len(free)) // len(ws)] for k in range(len(ws))]
        for x, p in zip(items, pos): self.after(p, x)
        return pos

    def vm(self, item, release, cost=4, force=False):
        if not hasattr(self, "occ"): self.occ = [0] * (len(self.mf) + 512)
        item = [I(x) if isinstance(x, str) else x for x in (item if isinstance(item, (list, tuple)) else [item])]
        pre, op = item[:-1], item[-1]
        if op.kind == "dma" and op.m0 != self.m0:
            sreg, c = op.m0
            pre = pre + [I(f"s_add_u32 m0, {sreg}, {c}" if sreg else f"s_mov_b32 m0, {c}", m0=op.m0)]
        if op.kind == "dma": self.m0 = op.m0
        p = max(release, 1)
        n = len(self.mf)
        while not force and (any(self.occ[p:p + cost]) or (p < n and self.load(p) > 1 and self.load(p + 1) <= 1 and not any(self.occ[p + 1:p + 1 + cost]))): p += 1
        for q in range(p, p + cost): self.occ[q] = 1
        if p >= n: self.spill.append(pre + [op])
        else:
            q = p - 1
            if len(pre) > 1 and p >= 2 and self.load(p - 2) < self.load(p - 1) + 1:
                h = len(pre) // 2
                self.after(p - 2, pre[:h]); pre = pre[h:]
            if pre: self.after(q if self.load(q) <= self.load(p) + 1 else p, pre)
            self.after(p, op)
        return p

    def chain(self, items, release, cost=4):
        pos = []
        for it in items:
            r = release(len(pos)) if callable(release) else release
            p = self.vm(it, max(r, pos[-1] + 1) if pos else r, cost); pos.append(p)
        return pos

    def edf(self, chains, t=1):
        if not hasattr(self, "occ"): self.occ = [0] * (len(self.mf) + 512)
        idx = [0] * len(chains); pos = [[] for _ in chains]
        while any(idx[c] < len(chains[c]) for c in range(len(chains))):
            cand = [c for c in range(len(chains)) if idx[c] < len(chains[c]) and chains[c][idx[c]][1] <= t]
            if not cand or self.occ[t]: t += 1; continue
            c = min(cand, key=lambda c: chains[c][idx[c]][2])
            it, r, d, cost = chains[c][idx[c]]
            if t < len(self.mf) - 1 and self.load(t) > 1 >= self.load(t + 1): t += 1
            self.vm(it, t, cost, force=True); pos[c].append(t); idx[c] += 1
            if t > d: print("  late by", t - d, ":", (it[-1] if isinstance(it, (list, tuple)) else it))
            t += cost
        return pos

    def emit(self, prog):
        prog.add(self.head)
        for m, p in zip(self.mf, self.post):
            prog.add(m); prog.add(p)


class Weaver:
    def __init__(self, prog, ops):
        self.p = prog; self.ops = list(ops); self.t = 0; self.nxt = 0; self.seen = set(); self.n = 0

    def _issue(self):
        it, gate, c = self.ops.pop(0)
        self.p.add(it); self.t = max(self.t, self.nxt) + 8; self.nxt = self.t - 8 + c; self.n += 1

    def ready(self):
        return self.ops and (self.ops[0][1] is None or id(self.ops[0][1]) in self.seen)

    def run(self, main):
        for grp in atomize(main):
            while self.ready() and self.t >= self.nxt: self._issue()
            for i in grp:
                self.p.add(i); self.seen.add(id(i))
                self.t += {"mfma": 12, "trans": 8, "meta": 0, "label": 0}.get(i.kind, 4)

    def until(self, n):
        while self.n < n and self.ready(): self._issue()
```

```python
import sys, os
sys.path.insert(0, os.path.dirname(os.path.abspath(__file__)))
from asm import I, Prog, Stream, need, finalize

KN = "recurrent_scan__linear_kernel_hedgehog__dense_activation_relu__prompt"

SLOT = 36864
S3 = 110592
MISC = 148480
FS = MISC
PH = 156672
SPEC = PH + 2048
ZR, IR0, ET = SPEC, SPEC + 40, SPEC + 120
VIMG = MISC
FA = MISC
CB = MISC + 2048
RSH = 163328
HALF = 55296
MB = 1 << 20
F1, F2, F3, F4, F5 = 4096, 8192, 16384, 20480, 24576
WQ, WQP = 1 * MB, 132096
W2P, W2S = 4 * MB, 331776
WOP, WOS = 10 * MB, 165888
HB = 12 * MB
KV1, KVC = 32 * MB, 33 * MB
OB = 36 * MB
PART = 40 * MB
STAMP = 60 * MB
OOB = 0x40000000
X, WQKV, WPHI, RP, W1, OUT, DBG, WS = "s[4:7]", "s[8:11]", "s[12:15]", "s[16:19]", "s[20:23]", "s[28:31]", "s[32:35]", "s[36:39]"
sM, sC, sN, sJ, sW, sLW = "s60", "s61", "s62", "s63", "s64", "s65"
sW1, sST, sRPs, sRPd = "s68", "s69", "s70", "s71"
MK = ["s[72:73]", "s[74:75]", "s[76:77]", "s[78:79]"]
sFX, sFY, sHO, sCNT = "s80", "s81", "s82", "s83"
tDMA, tA, tB, tC_, tD = "s84", "s85", "s86", "s87", "s88"
sFS, sW2K = "s89", "s90"
sHR = [None, "s91", "s92", "s93"]
sF = "s94"
sFP = "s95"
sOUT, sOUT8, sWO = "s96", "s97", "s98"
LOG2E = 0x3FB8AA3B


def vr(b, n=4): return f"v[{b}:{b + n - 1}]"
def ar(b, n=4): return f"a[{b}:{b + n - 1}]"
def mf(d, a, b, c): return f"v_mfma_f32_16x16x32_bf16 {d}, {a}, {b}, {c}"


def lanemask(pred):
    m = 0
    for l in range(64):
        if pred(l): m |= 1 << l
    return m


def setmask(pair, m, op="s_mov_b32"):
    lo = int(pair[2:pair.index(":")])
    return [f"{op} s{lo}, {m & 0xffffffff:#x}", f"{op} s{lo + 1}, {m >> 32:#x}"]


class Seq:
    def __init__(self, tmp): self.tmp = tmp; self.cur = None

    def at(self, base, const):
        hi, lo = const & ~4095, const & 4095
        if hi == 0: return [], base, lo
        pre = []
        if self.cur != (base, hi):
            pre = [I(f"s_add_u32 {self.tmp}, {base}, {hi}")]; self.cur = (base, hi)
        return pre, self.tmp, lo


def off(n): return f" offset:{n}" if n else ""


def build(opt):
    P = Prog()
    A = P.add
    nlab = [0]
    stamps = []; cnt = [0]
    CLK = "s_memtime" if opt.get("cyc") else "s_memrealtime"
    SREG = [24, 25, 26, 27, 66] + list(range(46, 60))

    def stamp(name):
        sel = opt.get("stamps")
        if not sel: return []
        cnt[0] += 1
        if name not in ("setup", "end") and sel < 3 and (cnt[0] & 1) != (sel & 1): return []
        k = len(stamps); stamps.append(name)
        t = I(f"{CLK} s[100:101]"); t.kind = "salu"
        r = [I(f"s_mov_b32 s{SREG[k - 1]}, s100"), t]
        if name == "end": r += [I("s_waitcnt lgkmcnt(0)"), I(f"s_mov_b32 s{SREG[k]}, s100")]
        return r

    def check(load_text, cmp_text, ident):
        nlab[0] += 1; n = nlab[0]
        return [I(cmp_text), I(f"s_cbranch_vccz L_ok{n}"), I("@begin"),
                I(f"s_mov_b32 {sCNT}, 0x8000"), I(f"L_spin{n}:"), I(load_text), I("s_waitcnt vmcnt(0)"),
                I(cmp_text), I(f"s_cbranch_vccz L_ok{n}"), I(f"s_sub_u32 {sCNT}, {sCNT}, 1"), I(f"s_cbranch_scc0 L_spin{n}"),
                I(f"buffer_store_dword v1, off, {DBG}, 0 offset:{16 + 4 * ident} sc1"), I("s_waitcnt vmcnt(0)"),
                I("@end"), I(f"L_ok{n}:")]

    CMPF = "v_cmp_ne_u32 vcc, v7, v31"

    A("s_cmp_ge_u32 s2, 256")
    A("s_cbranch_scc1 L_end")
    if opt.get("stamps"): A(f"{CLK} s[100:101]"); stamps.append("start")
    A("s_load_dwordx16 s[40:55], s[0:1], 0")
    A("s_load_dwordx4 s[56:59], s[0:1], 64")
    A("""v_lshrrev_b32 v1, 6, v0
         v_and_b32 v0, 63, v0
         v_readfirstlane_b32 s64, v1
         s_and_b32 s3, s2, 7
         s_lshr_b32 s66, s2, 3
         s_and_b32 s61, s3, 3
         s_lshr_b32 s3, s3, 2
         s_lshl_b32 s3, s3, 3
         s_lshr_b32 s60, s66, 2
         s_add_u32 s60, s60, s3
         s_and_b32 s62, s66, 3
         s_lshl_b32 s63, s61, 2
         s_add_u32 s63, s63, s62
         s_mul_i32 s65, s64, 9216""")
    tG, tI, tR, tC = "v76", "v77", "v78", "v79"
    a_, b_, c_, d_, e_ = "v80", "v81", "v82", "v83", "v84"
    A(f"""v_lshrrev_b32 {tG}, 4, v0
          v_and_b32 {tI}, 15, v0
          v_bfe_u32 {tR}, v0, 2, 2
          v_and_b32 {tC}, 3, v0
          v_lshlrev_b32 v1, 4, v0
          v_lshrrev_b32 v27, 3, v0
          v_mul_u32_u24 v27, 1152, v27
          v_and_b32 v28, 7, v0
          v_xor_b32 v28, v28, {tG}
          v_lshl_add_u32 v27, v28, 4, v27
          v_xor_b32 v28, 64, v27
          s_mul_i32 s84, {sM}, 147456
          s_mul_i32 s85, {sW}, 36864
          s_add_u32 s84, s84, s85
          s_add_u32 s85, s84, 9216
          s_add_u32 s86, s84, 18432
          s_add_u32 s87, s84, 27648
          s_mov_b32 s6, 2359296
          s_mov_b32 s7, 0x20000
          s_waitcnt lgkmcnt(0)
          s_mov_b32 s4, s40
          s_mov_b32 s5, s41
          s_load_dword s67, s[58:59], 0""")

    xd = [[], []]
    for sg in range(4):
        for d in range(9):
            xd[sg >> 1].append(A(I(f"buffer_load_dwordx4 v{27 + (sg & 1)}, {X}, s{84 + sg} offen{off(128 * d)} lds", m0=(sLW, sg * SLOT + 896 * d))))
    for base, src, n in ((8, 42, 1990656), (12, 44, 20736), (20, 50, 5308416), (28, 54, 2359296), (32, 56, 256), (36, 58, 268435456)):
        A(f"s_mov_b32 s{base}, s{src}\n s_mov_b32 s{base + 1}, s{src + 1}\n s_mov_b32 s{base + 2}, {n}\n s_mov_b32 s{base + 3}, 0x20000")
    A(f"""s_cmp_le_u32 {sM}, 8
          s_cselect_b32 s16, s52, s46
          s_cselect_b32 s17, s53, s47
          s_mov_b32 s18, 663552
          s_cmov_b32 s18, 5308416
          s_mov_b32 s19, 0x20000""")
    A(f"""s_lshl_b32 s84, {sW}, 7
          s_lshl_b32 s85, {sW}, 9
          s_mul_i32 s86, {sJ}, 1296""")
    for dd in range(2):
        o = f"v{85 + dd}"
        A(f"v_add_u32 {a_}, s84, v0" if dd == 0 else f"v_add_u32 {a_}, 64, {a_}")
        A(f"""v_mul_u32_u24 {b_}, 6554, {a_}
              v_lshrrev_b32 {b_}, 16, {b_}
              v_mad_i32_i24 {c_}, {b_}, -10, {a_}
              v_mul_u32_u24 {o}, 36, {b_}
              v_lshl_add_u32 {o}, {c_}, 2, {o}
              v_cmp_gt_u32 vcc, 9, {c_}
              v_cndmask_b32 {o}, {OOB}, {o}, vcc
              v_cmp_gt_u32 vcc, 36, {b_}
              v_cndmask_b32 {o}, {OOB}, {o}, vcc""")
        A(I(f"buffer_load_dword {o}, {WPHI}, s86 offen lds", m0=("s85", PH + 256 * dd)))
    A(f"""s_and_b32 s84, {sW}, 1
          s_lshl_b32 s85, s84, 3
          s_lshl_b32 s84, s84, 4
          s_lshr_b32 s86, {sW}, 1
          s_lshl_b32 s86, s86, 2
          s_add_u32 s84, s84, s86
          s_lshl_b32 s86, {sM}, 5
          s_add_u32 s84, s84, s86
          s_mul_i32 s84, s84, 3456
          s_mul_i32 s86, {sJ}, 72
          s_add_u32 {sFS}, s84, s86
          s_lshl_b32 {sW2K}, {sW}, 11
          s_movk_i32 s86, 3456
          v_add_u32 {a_}, s85, {tG}
          v_xor_b32 {a_}, {a_}, {tI}
          v_and_b32 {b_}, 3, {a_}
          v_min_u32 {c_}, 2, {b_}
          v_mul_u32_u24 {c_}, 1152, {c_}
          v_add_u32 {c_}, 64, {c_}
          v_cmp_eq_u32 vcc, 2, {b_}
          v_subrev_u32 {d_}, 32, {c_}
          v_cndmask_b32 {c_}, {c_}, {d_}, vcc
          v_cmp_eq_u32 vcc, 3, {b_}
          v_add_u32 {d_}, 4, {c_}
          v_cndmask_b32 {c_}, {c_}, {d_}, vcc""")
    for dd in range(2):
        o = f"v{253 + dd}"
        A(f"v_lshrrev_b32 {a_}, 2, {a_}" if dd == 0 else f"v_xor_b32 {a_}, 1, {a_}")
        A(f"""v_mul_u32_u24 {d_}, 1152, {a_}
              v_lshl_add_u32 {d_}, {b_}, 4, {d_}
              v_lshrrev_b32 {e_}, 1, {b_}
              v_lshl_add_u32 {e_}, {e_}, 2, {d_}
              v_cmp_eq_u32 vcc, 2, {a_}
              v_cndmask_b32 {d_}, {d_}, {e_}, vcc
              v_cmp_eq_u32 vcc, 3, {a_}
              v_cndmask_b32 {d_}, {d_}, {c_}, vcc
              v_mad_u32_u24 {o}, {tG}, s86, {d_}""")
        if dd: A(f"s_add_u32 s84, {sFS}, {8 * 3456}")
        A(I(f"buffer_load_dwordx4 {o}, {WQKV}, {'s84' if dd else sFS} offen lds", m0=(sW2K, FS + 1024 * dd)))
    A(f"""s_mov_b32 s84, -18
          s_movk_i32 s85, 9216
          s_movk_i32 s86, 1152
          s_mov_b32 s40, 0
          s_mov_b32 s41, 0
          s_mov_b32 s42, 0
          s_cmp_eq_u32 {sM}, 9
          s_cmov_b32 s40, 2
          s_cmp_eq_u32 {sM}, 10
          s_cmov_b32 s40, 20
          s_cmov_b32 s41, 68
          s_cmov_b32 s42, 16""")
    for d in range(9):
        q = "v0"
        if d: A(f"v_add_u32 {a_}, {64 * d}, v0"); q = a_
        A(f"""v_mul_u32_u24 {b_}, 3641, {q}
              v_lshrrev_b32 {b_}, 16, {b_}
              v_mad_i32_i24 {c_}, {b_}, s84, {q}
              v_lshlrev_b32 {c_}, 4, {c_}""")
        if d % 4: A(f"v_subrev_u32 {c_}, {(d % 4) * 1024}, {c_}")
        A(f"""v_and_b32 {d_}, 0x13, {b_}
              v_bfe_u32 {e_}, {b_}, 2, 1
              v_lshl_or_b32 {d_}, {e_}, 3, {d_}
              v_bfe_u32 {e_}, {b_}, 3, 1
              v_lshl_or_b32 {d_}, {e_}, 2, {d_}
              v_mad_u32_u24 v{8 + d}, {d_}, s85, {c_}
              v_lshrrev_b32 {e_}, 4, {b_}
              v_mad_u32_u24 {d_}, {e_}, s40, {b_}
              v_bfe_u32 {e_}, {b_}, 2, 2
              v_mad_u32_u24 {d_}, {e_}, s41, {d_}
              v_bfe_u32 {e_}, {b_}, 1, 1
              v_mad_u32_u24 {d_}, {e_}, s42, {d_}
              v_mad_u32_u24 v{64 + d}, {d_}, s86, {c_}""")
    A(f"""s_and_b32 s84, {sW}, 1
          s_mul_i32 s84, s84, {32 * 9216}
          s_lshr_b32 s85, {sW}, 1
          s_mul_i32 s85, s85, 288
          s_add_u32 s84, s84, s85
          s_mul_i32 s85, {sJ}, 576
          s_add_u32 {sW1}, s84, s85""")
    A(f"""s_lshl_b32 s84, {sM}, 2
          s_add_u32 s84, s84, {sW}
          s_mul_i32 s85, s84, 57
          s_lshr_b32 s85, s85, 9
          s_mul_i32 s86, s85, 9
          s_sub_u32 s86, s84, s86
          s_xor_b32 s85, s85, {sN}
          s_lshl_b32 s87, {sC}, 2
          s_add_u32 s85, s85, s87
          s_mul_i32 s85, s85, 288
          s_lshl_b32 s86, s86, 5
          s_add_u32 s85, s85, s86
          s_mul_i32 s40, s85, 1152
          s_mul_i32 s41, {sJ}, {W2S}
          s_mul_i32 s84, s84, 9216
          s_add_u32 s41, s41, s84
          s_add_u32 s41, s41, {W2P}
          s_add_u32 s87, s87, {sW}
          s_mul_i32 s42, s87, {36 * 1152}
          s_mul_i32 {sWO}, {sN}, {WOS}
          s_add_u32 {sWO}, {sWO}, {WOP}
          s_mul_i32 s87, s87, 9216
          s_add_u32 s43, {sWO}, s87
          s_mul_i32 s44, {sC}, {288 * 1152}
          s_add_u32 s44, s44, {16 * 1152}
          s_mul_i32 s45, {sC}, 9216
          s_add_u32 s45, s45, {sWO}
          s_add_u32 s45, s45, {16 * 9216}
          s_mov_b32 {sRPs}, {OOB}
          s_mov_b32 {sRPd}, {OOB}
          s_cmp_le_u32 {sM}, 8
          s_cmov_b32 {sRPs}, s40
          s_cmov_b32 {sRPd}, s41
          s_cmp_eq_u32 {sM}, 9
          s_cmov_b32 {sRPs}, s42
          s_cmov_b32 {sRPd}, s43
          s_lshr_b32 s84, {sC}, 1
          s_or_b32 s84, s84, {sW}
          s_xor_b32 s85, {sM}, 10
          s_or_b32 s84, s84, s85
          s_cmp_eq_u32 s84, 0
          s_cmov_b32 {sRPs}, s44
          s_cmov_b32 {sRPd}, s45
          s_mul_i32 s84, {sN}, 288
          s_add_u32 {sRPs}, {sRPs}, s84""")
    A(f"""s_lshl_b32 s84, {sM}, 1
          s_cmp_eq_u32 {sW}, 2
          s_cmov_b32 s84, {sM}
          s_mul_i32 s85, {sW}, 36
          s_min_u32 s85, s85, 90
          s_add_u32 s84, s84, s85
          s_lshl_b32 s84, s84, 10
          s_mul_i32 s85, {sJ}, {WQP}
          s_add_u32 s85, s85, {WQ}
          s_add_u32 {sFX}, s84, s85
          s_add_u32 {sST}, s85, {sLW}
          s_add_u32 {sFY}, {sFX}, 1024
          s_cmp_eq_u32 {sW}, 2
          s_cmov_b32 {sFY}, {OOB}
          s_lshl_b32 s84, {sM}, 2
          s_add_u32 s84, s84, {sW}
          s_lshl_b32 s84, s84, 4
          s_lshl_b32 s85, {sC}, 2
          s_add_u32 s84, s84, s85""")
    for dl in range(4):
        dst = sHO if dl == 0 else sHR[dl]
        A(f"""s_xor_b32 s85, {sN}, {dl}
              s_add_u32 s85, s85, s84
              s_mul_i32 s85, s85, 18432
              s_add_u32 {dst}, s85, {HB}""")
    A(f"""v_lshrrev_b32 {a_}, 3, {tI}
          v_mul_u32_u24 {a_}, 36864, {a_}
          v_and_b32 {b_}, 7, {tI}
          v_lshl_add_u32 {a_}, {b_}, 7, {a_}
          v_lshrrev_b32 {b_}, 1, {tI}
          v_xor_b32 {b_}, {b_}, {tG}
          v_lshl_add_u32 {a_}, {b_}, 4, {a_}
          v_add_u32 v29, {sLW}, {a_}
          v_xor_b32 v30, 64, v29
          v_lshrrev_b32 {a_}, 1, {tG}
          v_lshl_add_u32 {a_}, {a_}, 4, {tR}
          v_and_b32 {b_}, 1, {tG}
          v_lshl_add_u32 {a_}, {b_}, 2, {a_}
          v_mul_u32_u24 {a_}, 288, {a_}
          v_lshl_add_u32 v2, {tC}, 3, {a_}
          v_add_u32 v3, {HALF}, v2
          v_add_u32 v4, {HALF}, v1
          v_lshrrev_b32 {a_}, 2, v0
          v_mul_u32_u24 {a_}, 288, {a_}
          s_add_u32 s84, {sLW}, {S3}
          v_add_u32 {a_}, s84, {a_}
          v_lshl_add_u32 v17, {tC}, 4, {a_}
          v_lshl_add_u32 v18, {tC}, 3, {a_}
          v_add_u32 v18, 256, v18
          v_xor_b32 {a_}, {tG}, {tI}
          v_lshlrev_b32 {a_}, 4, {a_}
          v_lshl_add_u32 {a_}, {tI}, 8, {a_}
          v_add_u32 {a_}, {S3}, {a_}
          v_xor_b32 v25, 64, {a_}
          v_xor_b32 v26, 192, {a_}
          s_cmp_eq_u32 {sW}, 3
          s_cselect_b32 s84, 128, 0
          s_cselect_b64 s[44:45], -1, 0
          v_xor_b32 v24, s84, {a_}""")
    g_, r_, cg_ = (lambda l: l >> 4), (lambda l: (l >> 2) & 3), (lambda l: l & 3)
    A(f"""s_lshl_b32 s84, {sW}, 4
          s_add_u32 s85, s84, {PH}
          s_add_u32 s86, s84, {IR0}
          v_mov_b32 {e_}, {ZR}
          v_mul_u32_u24 {b_}, 24, {tR}
          v_add_u32 {b_}, {ET}, {b_}
          v_add_u32 {c_}, 8, {b_}
          v_cmp_gt_u32 vcc, 32, v0
          v_cndmask_b32 {b_}, {b_}, {c_}, vcc
          v_lshl_add_u32 {a_}, {tG}, 3, {tR}
          v_mad_u32_u24 {a_}, {a_}, 40, s85""")
    for h in range(2):
        hd = lambda l: int(8 * g_(l) + 4 * h + r_(l) >= 18)
        if h: A(f"v_add_u32 {a_}, 160, {a_}")
        A(f"s_cmp_eq_u32 {sW}, 3")
        A(setmask("s[40:41]", lanemask(lambda l: cg_(l) == hd(l))))
        A(setmask("s[40:41]", lanemask(lambda l: cg_(l) == 2 * (g_(l) & 1) + h), "s_cmov_b32"))
        A(setmask("s[42:43]", lanemask(lambda l: cg_(l) == hd(l) + 2)))
        A(setmask("s[42:43]", 0, "s_cmov_b32"))
        A(f"""v_cndmask_b32 {c_}, {a_}, {b_}, s[44:45]
              v_cndmask_b32 v{19 + h}, {e_}, {c_}, s[40:41]
              v_cndmask_b32 v{21 + h}, {e_}, {a_}, s[42:43]""")
    A(f"s_cmp_eq_u32 {sW}, 3")
    A(setmask("s[40:41]", lanemask(lambda l: (g_(l), cg_(l)) in ((0, 1), (1, 3)))))
    A(setmask("s[40:41]", 0, "s_cmov_b32"))
    A(setmask("s[42:43]", lanemask(lambda l: (g_(l), cg_(l)) in ((2, 0), (3, 1)) and r_(l) < 2)))
    A(setmask("s[42:43]", 0, "s_cmov_b32"))
    A(f"""v_mad_u32_u24 {a_}, {tR}, 40, s85
          v_add_u32 {a_}, {32 * 40}, {a_}
          v_mad_u32_u24 {b_}, {tR}, 40, s86
          v_cndmask_b32 v23, {e_}, {a_}, s[40:41]
          v_cndmask_b32 v23, v23, {b_}, s[42:43]""")
    for r in range(4): A(setmask(MK[r], lanemask(lambda l: l == 20 * (l >> 4) + r)))
    A(setmask("s[40:41]", lanemask(lambda l: l in (19, 32, 45))))
    A(setmask("s[42:43]", lanemask(lambda l: l in (29, 38, 51))))
    A(f"""v_mov_b32 v248, 0x3f803f80
          v_mov_b32 v249, 0x3f803f80
          v_mov_b32 v250, 0x3f803f80
          v_mov_b32 v251, 0x3f803f80
          v_mov_b32 v252, 1.0
          v_mov_b32 {a_}, 0x3f80
          v_cndmask_b32 {b_}, 0, {a_}, {MK[0]}
          v_cndmask_b32 {b_}, {b_}, v252, {MK[1]}
          v_cndmask_b32 {c_}, 0, {a_}, {MK[2]}
          v_cndmask_b32 {c_}, {c_}, v252, {MK[3]}
          v_accvgpr_write_b32 a248, 0
          v_accvgpr_write_b32 a249, 0
          v_accvgpr_write_b32 a250, {b_}
          v_accvgpr_write_b32 a251, {c_}
          v_accvgpr_write_b32 a252, 0
          v_accvgpr_write_b32 a253, 0
          v_cndmask_b32 {b_}, 0, {a_}, s[40:41]
          v_cndmask_b32 {b_}, {b_}, v252, s[42:43]
          v_lshlrev_b32 {c_}, 2, v0
          v_add_u32 {c_}, {SPEC}, {c_}
          v_or_b32 {d_}, {sW}, v0
          v_cmp_eq_u32 vcc, 0, {d_}
          v_mov_b32 v27, {OOB}
          v_cndmask_b32 v27, v27, 0, vcc
          s_waitcnt lgkmcnt(0)
          ds_write_b32 {c_}, {b_}""")
    for q in range(4):
        A(f"v_accvgpr_write_b32 a{122 + (q >> 1) * 4 + (q & 1)}, 0")
    SEL = [ar(250), ar(248)]
    A(f"s_or_b32 s84, s2, {sW}\n s_cmp_lg_u32 s84, 0\n s_cbranch_scc1 L_noepoch")
    P.begin()
    A(f"""s_mul_i32 s67, s67, 0x41c64e6d
          s_add_u32 s67, s67, 0x3039
          s_cmp_eq_u32 s67, 0
          s_cmov_b32 s67, 0x3039
          v_mov_b32 v31, s67
          buffer_store_dword v31, v27, {WS}, 0 offen sc1
          buffer_store_dword v31, v27, {DBG}, 0 offen sc1""")
    P.end()
    A("L_noepoch:")
    A(stamp("setup"))

    w1seq = {}

    def w1dma(S, d):
        pre = []
        if d == 0 and S > 0: pre = [I(f"s_add_u32 {sW1}, {sW1}, {64 * 9216}")]
        i = I(f"buffer_load_dwordx4 v{8 + d}, {W1}, {sW1} offen{off((d % 4) * 1024)} lds", m0=(sLW, (S % 3) * SLOT + (d // 4) * 4096))
        w1seq.setdefault(S, []).append(i)
        return pre + [i]

    def ln_stats(tt, su, sq, after):
        raw = 104 + 72 * tt
        A(need(xd[tt]))
        if tt: A("v_add_u32 v29, 73728, v29\n v_add_u32 v30, 73728, v30")
        rd = [A(f"ds_read_b128 {vr(raw + 4 * s)}, v{29 + (s & 1)}{off((s >> 1) * 1024)}") for s in range(18)]
        for s in range(18):
            x = vr(raw + 4 * s)
            A(mf(vr(su), vr(248), x, vr(su) if s else 0))
            A(mf(vr(sq), x, x, vr(sq) if s else 0))
            if s & 1: A(after(s >> 1))

    def ln_post(tt, su, sq, bc, nm):
        A(f"v_cndmask_b32 v28, 0, v{sq}, {MK[0]}")
        for r in range(1, 4): A(f"v_cndmask_b32 v28, v28, v{sq + r}, {MK[r]}")
        A(f"v_mfma_f32_16x16x4_f32 {vr(bc)}, v252, v28, 0")
        for r in range(4): A(f"v_mul_f32 v{nm + r}, 0xbae38e39, v{su + r}")

    def ln_rstd(tt, bc, nm):
        return [f"v_mul_f32 v28, 0x3ae38e39, v{bc}",
                f"v_fma_f32 v28, -v{nm}, v{nm}, v28",
                "v_max_f32 v28, 0, v28",
                "v_add_f32 v28, 0x3727c5ac, v28",
                f"v_rsq_f32 v{5 + tt}, v28"]

    def ln_center(tt, nm, tmp, nset, lag, extra):
        raw = 104 + 72 * tt
        def ops(s):
            D = tmp + 8 * (s % nset)
            dst = D if tt == 0 else 32 + 4 * s
            for q in range(4): A(f"v_cvt_pk_bf16_f32 v{dst + q}, v{D + 2 * q}, v{D + 2 * q + 1}")
            if tt == 0:
                for q in range(4): A(f"v_accvgpr_write_b32 a{4 * s + q}, v{D + q}")
        for s in range(18 + lag):
            if s < 18:
                D = tmp + 8 * (s % nset)
                A(mf(vr(D), SEL[0], vr(raw + 4 * s), vr(nm)))
                A(mf(vr(D + 4), SEL[1], vr(raw + 4 * s), vr(nm)))
            if s == 0: A(extra)
            if s >= lag: ops(s - lag)

    ln_stats(0, 32, 36, lambda d: w1dma(0, d))
    for d in range(9): A(w1dma(1, d))
    ln_post(0, 32, 36, 40, 32)
    ln_center(0, 32, 80, 2, 1, ln_rstd(0, 40, 32))
    A(stamp("ln0"))
    ln_stats(1, 96, 100, lambda d: w1dma(2, d))
    A(f"s_cmp_ge_u32 {sRPs}, {OOB}\n s_cbranch_scc1 L_norp")
    P.begin()
    rpd = [A(I(f"buffer_load_dwordx4 v{64 + d}, {RP}, {sRPs} offen{off((d % 4) * 1024)} lds", m0=(sLW, S3 + (d // 4) * 4096))) for d in range(9)]
    P.end()
    A("L_norp:")
    ln_post(1, 96, 100, 108, 104)
    ln_center(1, 104, 112, 3, 2, ln_rstd(1, 108, 104))
    A(f"""v_and_b32 v28, 15, v0
          s_lshl_b32 s84, {sW}, 7
          s_add_u32 s84, s84, {RSH}
          v_lshl_add_u32 v28, v28, 2, s84
          ds_write_b32 v28, v5
          ds_write_b32 v28, v6 offset:64""")
    A(stamp("ln1"))

    dma_of = dict(w1seq)
    stseq = Seq(tDMA)

    def stream_dma(S, d):
        pre = []
        if S == 13 and d == 0:
            pre = [I(f"s_mul_i32 {sST}, {sJ}, {W2S}"), I(f"s_add_u32 {sST}, {sST}, {W2P}"), I(f"s_add_u32 {sST}, {sST}, {sLW}")]
            stseq.cur = None
        if S == 12:
            if d == 0:
                pre = [I(f"s_lshl_b32 s99, {sW}, 12"), I(f"s_sub_u32 {sST}, {sST}, s99"), I(f"s_mul_i32 s99, {sW}, 5120")]
                stseq.cur = None
            p2, so, lo = stseq.at(sST, 3 * SLOT + d * 1024)
            i = I(f"buffer_load_dwordx4 v1, {WS}, {so} offen{off(lo)} sc1 lds", m0=("s99", (S % 3) * SLOT + d * 1024 - lo))
        else:
            c = (S - 9 if S < 13 else S - 13) * SLOT + d * 1024
            p2, so, lo = stseq.at(sST, c)
            i = I(f"buffer_load_dwordx4 v1, {WS}, {so} offen{off(lo)} sc1 lds", m0=(sLW, (S % 3) * SLOT + d * 1024 - lo))
        dma_of.setdefault(S, []).append(i)
        return pre + p2 + [i]

    def dma_items(S):
        if S <= 8:
            r = [w1dma(S, d) for d in range(9)]; dma_of[S] = w1seq[S]; return r
        return [stream_dma(S, d) for d in range(5 if S == 12 else 9)]

    def ldsoff(o, lo, hi): return (lo, o) if o < HALF else (hi, o - HALF)

    def gemm(frags, la, nb, ring, first_barrier=True):
        S = Stream(); reads = []; bar = {}; barneed = {}
        for n, (st, first, rd, mm) in enumerate(frags):
            for t in mm(ar(ring + 4 * (n % nb))): S.mfma(t)
        for n, (st, first, rd, mm) in enumerate(frags):
            pos = 2 * (n - la)
            if first:
                bar[st] = max(pos, -1)
                if n or first_barrier:
                    barneed[st] = need()
                    S.after(bar[st], barneed[st], "s_barrier", stamp(f"B{st}"))
            rs = [I(t) for t in rd(ring + 4 * (n % nb))]
            reads.append(rs)
            for k, r in enumerate(rs): S.after(pos + k if pos >= 0 else -1, r)
        for n in range(0, len(frags) - 1, 2): S.mf[2 * n].deps += reads[n + 1]
        return S, bar, barneed

    def b128(slot, f):
        base, o = ldsoff(slot * SLOT + f * 1024, "v1", "v4")
        return lambda r: [f"ds_read_b128 {ar(r)}, {base}{off(o)}"]

    XC = lambda tt, s: ar(4 * s) if tt == 0 else vr(32 + 4 * s)
    fr = []
    for St in range(9):
        for f in range(36):
            ks, T = divmod(f, 18); b, Tp = divmod(T, 9); s = 2 * St + ks
            base, o = ldsoff((St % 3) * SLOT + b * 18432 + ks * 9216 + 32 * Tp, "v2", "v3")
            rd = lambda r, base=base, o=o: [f"ds_read_b64_tr_b16 {ar(r, 2)}, {base}{off(o)}", f"ds_read_b64_tr_b16 {ar(r + 2, 2)}, {base}{off(o + 2304)}"]
            acc = 104 + 16 * (T >> 1) + 8 * (T & 1)
            mm = lambda a, acc=acc, s=s: [mf(vr(acc + 4 * tt), a, XC(tt, s), vr(acc + 4 * tt) if s else 0) for tt in range(2)]
            fr.append((St, f == 0, rd, mm))
    TACC = [248, 8, 112, 128, 144, 160, 176]
    for f in range(126):
        if f < 72: tile, s = 2 * (f // 36) + (f & 1), (f % 36) >> 1
        elif f < 90: tile, s = 4, f - 72
        else: tile, s = 5 + (f & 1), (f - 90) >> 1
        St = 9 + f // 36
        acc = TACC[tile]
        mm = lambda a, acc=acc, s=s: [mf(vr(acc + 4 * tt), a, XC(tt, s), vr(acc + 4 * tt) if s else 0) for tt in range(2)]
        fr.append((St, f % 36 == 0, b128(St % 3, f % 36), mm))
    SA, bar, bn = gemm(fr, opt.get("laA", 6), 8, 72)
    dstart, dstep = opt.get("dstart", 4), opt.get("dstep", 4)
    for St in range(1, 13):
        for d, it in enumerate(dma_items(St + 2)):
            if opt.get("nodma") and St + 2 in (5, 6, 7, 8): dma_of[St + 2] = []; continue
            SA.after(bar[St] + dstart + dstep * d, it)
    for St in range(13): bn[St].deps += dma_of[St]

    FB, FAa = 104, 128
    foldB = []
    for ty, regs in enumerate((("v19", "v20"), ("v21", "v22"), ("v23",))):
        for x in range(2):
            for h, va in enumerate(regs):
                foldB.append(I(f"ds_read_b64_tr_b16 {ar(FB + 8 * ty + 4 * x + 2 * h, 2)}, {va}{off(8 * x)}"))

    def fold_unit(base, dx, dy):
        rd = [I(f"ds_read_b128 {ar(FAa + 8 * ty + 4 * be)}, v{24 + ty}{off(base + 4096 * be)}") for ty in range(3) for be in range(2)]
        mm = [[I(mf(vr(248 + 4 * be), ar(FAa + 8 * ty + 4 * be), ar(FB + 8 * ty + 4 * x), vr(248 + 4 * be) if ty else 0))
               for ty in range(3) for be in range(2)] for x in range(2)]
        cv = [[I(f"v_cvt_pk_bf16_f32 v{(248, 28)[x] + q}, v{248 + 2 * q}, v{249 + 2 * q}") for q in range(4)] for x in range(2)]
        st = [I(f"buffer_store_dwordx4 {vr((248, 28)[x])}, v1, {WS}, {(dx, dy)[x]} offen sc1") for x in range(2)]
        return rd, mm, cv, st
    fs2 = [I(f"buffer_load_dwordx4 v{253 + dd}, {WQKV}, {tA} offen lds", m0=(sW2K, S3 + 1024 * dd)) for dd in range(2)]
    SA.after(-1, f"s_cmp_lt_u32 {sM}, 14", "s_cbranch_scc1 L_nofs2", "@begin",
             f"s_add_u32 {tA}, {sFS}, {64 * 3456}", fs2[0], f"s_add_u32 {tA}, {tA}, {8 * 3456}", fs2[1], "@end", "L_nofs2:")
    bn[2].deps += fs2
    rd, mm, cv, st1 = fold_unit(FS - S3, sFX, sFY)
    SA.spread(foldB + rd, 0, 16)
    SA.spread(mm[1], 20, 32); SA.spread(cv[1], 36, 40); SA.after(41, st1[1])
    SA.spread(mm[0], 42, 54); SA.spread(cv[0], 58, 62); SA.after(63, st1[0])
    rd, mm, cv, st2 = fold_unit(0, tA, tB)
    SA.after(bar[2] + 2, f"s_cmp_lt_u32 {sM}, 14", "s_cbranch_scc1 L_nof2", "@begin",
             f"s_cmp_eq_u32 {sW}, 2", f"s_movk_i32 {tA}, 4096", f"s_cmovk_i32 {tA}, 2048", f"s_add_u32 {tA}, {tA}, {sFX}", f"s_add_u32 {tB}, {sFY}, 4096",
             rd, mm[1], cv[1], st2[1], mm[0], cv[0], st2[0], "@end", "L_nof2:")
    RPA = 152
    rpr, rps = [], []
    sq = Seq(tC_)
    for T in range(9):
        va, o = ("v17", 64 * (T >> 1) + 8 * (T & 1)) if T < 8 else ("v18", 0)
        rpr += [I(f"ds_read_b64_tr_b16 {ar(RPA + 4 * T + 2 * h, 2)}, {va}{off(o + 4608 * h)}") for h in range(2)]
        pre, so, lo = sq.at(sRPd, T * 1024)
        rps.append(pre + [I(f"buffer_store_dwordx4 {ar(RPA + 4 * T)}, v1, {WS}, {so} offen{off(lo)} sc1")])
    p0 = bar[2] + opt.get("rp0", 24)
    SA.after(p0 - 1, need(rpd))
    SA.spread(rpr, p0, p0 + 18); SA.spread(rps, p0 + 22, p0 + 40)
    nl = f"buffer_load_dword v7, off, {DBG}, 0 sc1"
    SA.after(bar[1] + 1, nl)
    SA.after(bar[3] - 1, check(nl, "v_cmp_eq_u32 vcc, 0, v7", 0))
    bn[4].deps += st1 + st2 + [x[-1] for x in rps]

    def signal(pre): return pre + [f"buffer_store_dword v7, v27, {WS}, {sF} offen sc1"]
    SA.after(bar[4] + 1, signal([f"s_lshl_b32 {sF}, {sJ}, 5", f"s_add_u32 {sF}, {sF}, {sM}", f"s_lshl_b32 {sF}, {sF}, 2", f"s_add_u32 {sF}, {sF}, {F1}"]))
    f1a = [f"v_and_b32 v28, 15, v0", f"v_lshlrev_b32 v28, 2, v28", f"s_lshl_b32 {tA}, {sJ}, 7", f"v_add_u32 v28, {tA}, v28",
           f"v_and_b32 v29, 3, v0", f"v_lshlrev_b32 v29, 9, v29", f"s_lshl_b32 {tA}, {sN}, 7", f"v_add_u32 v29, {tA}, v29",
           f"v_bfe_u32 v30, v0, 2, 1", f"v_lshl_add_u32 v29, v30, 2, v29", f"v_add_u32 v29, 36, v29",
           setmask("s[40:41]", lanemask(lambda l: 16 <= l < 22)), f"v_cndmask_b32 v28, v28, v29, s[40:41]", f"s_movk_i32 {sFP}, {F1}"]
    SA.spread(f1a, bar[5] + 2, bar[5] + 30)
    fl = f"buffer_load_dword v31, v28, {WS}, {sFP} offen sc1"
    SA.after(bar[6] + 1, fl)
    SA.after(bar[7] - 1, check(fl, CMPF, 1))
    sq = Seq(tC_)
    wol = [[I(f"s_lshl_b32 {tD}, {sW}, 11"), I(f"s_add_u32 {tD}, {tD}, {sWO}")]]
    for k in range(18):
        for x in range(2):
            c = k * 9216 + x * 1024
            pre = [I(f"s_add_u32 {tC_}, {tD}, {k * 9216}")] if x == 0 else []
            wol.append(pre + [I(f"buffer_load_dwordx4 {ar(104 + 72 * x + 4 * k)}, v1, {WS}, {tC_} offen{off(x * 1024)} sc1")])
    if not opt.get("nowol"): SA.spread(wol, bar[7] + 2, bar[9] - 4)
    HWs, HFs = tA, tB
    adr = [f"v_and_b32 v28, 15, v0", f"v_lshrrev_b32 v29, 4, v0", f"s_lshl_b32 {tA}, {sW}, 5", f"v_add_u32 v28, {tA}, v28",
           f"v_mul_u32_u24 v17, 296, v28", f"v_mul_u32_u24 v30, 72, v29", f"v_add3_u32 v17, v17, v30, {sFP}",
           f"v_mul_u32_u24 v18, 104, v28", f"v_lshl_add_u32 v18, v29, 3, v18", f"v_add_u32 v18, {VIMG}, v18"]
    adr.insert(0, f"s_mov_b32 {sFP}, {S3}")
    adr += [f"v_lshrrev_b32 v28, 2, v0", f"v_and_b32 v29, 3, v0",
            f"s_lshr_b32 {tA}, {sW}, 1", f"s_and_b32 {tB}, {sW}, 1",
            f"v_mul_u32_u24 v20, 296, v28", f"s_mul_i32 s40, {tA}, 72", f"s_lshl_b32 s41, {tB}, 3", f"s_add_u32 s40, s40, s41",
            f"s_add_u32 s40, s40, {S3 + 144}", f"v_lshl_add_u32 v19, v29, 4, v20", f"v_add_u32 v19, s40, v19",
            f"v_and_b32 v30, 1, v29", f"v_mul_u32_u24 v30, 72, v30", f"v_add_u32 v20, v20, v30", f"v_add_u32 v20, {S3 + 208}, v20",
            f"v_mul_u32_u24 v21, 104, v28", f"v_lshl_add_u32 v21, v29, 3, v21", f"s_lshl_b32 s40, {tA}, 5", f"s_add_u32 s40, s40, {VIMG}",
            [f"s_mov_b32 s41, {VIMG + 64}", f"s_cmp_eq_u32 {tB}, 0", f"s_cselect_b32 s42, s40, s41", f"s_cselect_b32 s43, s41, s40"],
            f"v_add_u32 v22, s43, v21", f"v_add_u32 v21, s42, v21"]
    def xsel(h, i): return 0 if i == h else 1 if i == 4 * h + 2 else 2 if i == 4 * h + 3 else None
    adr += [f"s_lshl_b32 s40, {sJ}, 2", f"s_add_u32 s40, s40, {sW}", f"s_lshl_b32 s40, s40, 4", f"s_add_u32 s40, s40, {sM}",
            f"s_lshl_b32 s41, s40, 9", f"s_add_u32 s41, s41, {KVC}", f"s_lshl_b32 s40, s40, 10", f"s_add_u32 s40, s40, {KV1}",
            f"v_add_u32 v23, s40, v1",
            f"v_and_b32 v28, 3, v0", f"v_subrev_u32 v28, 1, v28", f"v_max_i32 v28, 0, v28", f"v_lshrrev_b32 v29, 4, v0",
            f"v_mad_u32_u24 v28, v29, 3, v28", f"v_lshl_add_u32 v28, v28, 4, s41", f"v_mov_b32 v30, {OOB}",
            [f"s_cmp_lt_u32 {sW}, 2"] + setmask("s[42:43]", lanemask(lambda l: xsel(1, l & 15) is not None))
            + setmask("s[42:43]", lanemask(lambda l: xsel(0, l & 15) is not None), "s_cmov_b32"),
            f"v_cndmask_b32 v24, v30, v28, s[42:43]",
            f"v_add_u32 v28, 192, v28", f"v_and_b32 v29, 15, v0", f"v_lshl_add_u32 v29, v29, 4, s41", f"v_add_u32 v29, 192, v29",
            [f"s_mov_b64 s[42:43], 0", f"s_cmp_eq_u32 {sW}, 1"]
            + setmask("s[42:43]", lanemask(lambda l: l < 32 and xsel(l >> 4, l & 15) is not None), "s_cmov_b32"),
            f"v_cndmask_b32 v25, v30, v28, s[42:43]",
            [f"s_mov_b64 s[42:43], 0", f"s_cmp_eq_u32 {sW}, 0", "s_cmov_b32 s42, 0xffff", f"s_cmp_eq_u32 {sW}, 2", "s_cmov_b32 s42, 0xffff0000"],
            f"v_cndmask_b32 v25, v25, v29, s[42:43]",
            [f"s_bitcmp1_b32 {sW}, 0", "s_cselect_b64 s[42:43], -1, 0"],
            f"v_cndmask_b32 v28, v23, v24, s[42:43]", f"v_cndmask_b32 v24, v24, v23, s[42:43]", f"v_mov_b32 v23, v28"]
    SA.spread(adr, bar[7] + 3, bar[8] + 40)
    hst = []
    sq = Seq(tA)
    for k in range(9):
        g0 = 104 + 16 * k
        its = []
        for tt in range(2):
            src = [g0 + 4 * tt, g0 + 4 * tt + 2, g0 + 8 + 4 * tt, g0 + 10 + 4 * tt]
            its += [f"v_cvt_pk_bf16_f32 v{g0 + 4 * tt + q}, v{src[q]}, v{src[q] + 1}" for q in range(4)]
            its += [f"v_pk_max_i16 v{g0 + 4 * tt + q}, v{g0 + 4 * tt + q}, 0" for q in range(4)]
            pre, so, lo = sq.at(sHO, (2 * k + tt) * 1024)
            s_ = I(f"buffer_store_dwordx4 {vr(g0 + 4 * tt)}, v1, {WS}, {so} offen{off(lo)}{'' if opt.get('hplain') else ' sc1'}")
            if not opt.get("nohst"): hst.append(s_); its.append(pre + [s_])
        SA.spread(its, 624 + 10 * k, 634 + 10 * k)
    bn[12].deps += hst
    SA.after(bar[12] + 1, signal([f"s_lshl_b32 {sF}, {sM}, 2", f"s_add_u32 {sF}, {sF}, {sC}", f"s_lshl_b32 {sF}, {sF}, 5", f"s_add_u32 {sF}, {sF}, {sN}",
                                  f"s_lshl_b32 {sF}, {sF}, 2", f"s_add_u32 {sF}, {sF}, {F2}"]))

    pw = []

    def softmax(tt, EP):
        y = [TACC[f >> 2] + 4 * tt + (f & 3) for f in range(18)]
        L = [f"v_mul_f32 v28, {LOG2E:#x}, v{5 + tt}"]
        for op, d in (("max", 29), ("min", 30)):
            L.append(f"v_{op}3_f32 v{d}, v{y[0]}, v{y[1]}, v{y[2]}")
            for f in range(3, 17, 2): L.append(f"v_{op}3_f32 v{d}, v{d}, v{y[f]}, v{y[f + 1]}")
            L.append(f"v_{op}_f32 v{d}, v{d}, v{y[17]}")
        L += ["v_mul_f32 v29, v29, v28", "v_mul_f32 v30, v30, v28"]
        for f in range(18):
            L += [f"v_fma_f32 v{EP[f]}, v{y[f]}, v28, -v29", f"v_fma_f32 v{y[f]}, -v{y[f]}, v28, v30"]
        for f in range(18):
            L += [f"v_exp_f32 v{EP[f]}, v{EP[f]}", f"v_exp_f32 v{y[f]}, v{y[f]}"]
        L += [f"v_add_f32 v29, v{EP[0]}, v{EP[1]}", f"v_add_f32 v30, v{y[0]}, v{y[1]}"]
        for f in range(2, 18): L += [f"v_add_f32 v29, v29, v{EP[f]}", f"v_add_f32 v30, v30, v{y[f]}"]
        L += ["v_rcp_f32 v29, v29", "v_rcp_f32 v30, v30"]
        for f in range(18): L += [f"v_mul_f32 v{EP[f]}, v29, v{EP[f]}", f"v_mul_f32 v{y[f]}, v30, v{y[f]}"]
        for q in range(18):
            src = [EP[2 * q], EP[2 * q + 1]] if q < 9 else [y[2 * q - 18], y[2 * q - 17]]
            L.append(f"v_cvt_pk_bf16_f32 v{EP[q]}, v{src[0]}, v{src[1]}")
            if q & 1:
                w_ = I(f"ds_write_b64 v17, {vr(EP[q - 1], 2)}{off(4 * (q - 1) + 4736 * tt)}"); pw.append(w_); L.append(w_)
        return L
    EP0 = list(range(192, 200)) + list(range(208, 216)) + [224, 225]
    SA.spread(softmax(0, EP0), 832, 900)
    SA.emit(P)
    A(stamp("A_end"))
    A(softmax(1, list(range(32, 50))))
    fl2 = f"buffer_load_dword v31, v26, {WS}, {sFP} offen sc1"
    A(f"""v_and_b32 v26, 3, v0
          v_lshlrev_b32 v26, 2, v26
          s_lshl_b32 {sFP}, {sM}, 2
          s_add_u32 {sFP}, {sFP}, {sC}
          s_lshl_b32 {sFP}, {sFP}, 7
          s_add_u32 {sFP}, {sFP}, {F2}""")
    for tt in range(2):
        for x, src in enumerate((160, 176)):
            b = src + 4 * tt
            for r in range(4): A(f"v_mul_f32 v{b + r}, v{5 + tt}, v{b + r}")
            A(f"v_cvt_pk_bf16_f32 v{b}, v{b}, v{b + 1}\n v_cvt_pk_bf16_f32 v{b + 1}, v{b + 2}, v{b + 3}")
            pw.append(A(f"ds_write_b64 v18, {vr(b, 2)}{off(32 * x + 1664 * tt)}"))
        b = 146 + 4 * tt
        A(f"""v_mul_f32 v{b}, v{5 + tt}, v{b}
              v_mul_f32 v{b + 1}, v{5 + tt}, v{b + 1}
              v_cvt_pk_bf16_f32 v{b + 1}, v{b}, v{b + 1}
              v_mov_b32 v{b}, 0x3f803f80""")
        pw.append(A(f"ds_write_b64 v18, {vr(b, 2)}{off(64 + 1664 * tt)}"))
    A(need(pw, dma_of[13]))
    A("s_barrier")
    A(stamp("X"))
    A(fl2)
    d15 = dma_items(15)
    for k in range(4):
        for u, va in enumerate(("v19", "v21", "v22", "v20")):
            pitch = 296 if va in ("v19", "v20") else 104
            for h in range(2):
                A(f"ds_read_b64_tr_b16 {vr(32 + 16 * k + 4 * u + 2 * h, 2)}, {va}{off((32 * k + 16 * h) * pitch)}")
        A(d15[2 * k]); A(d15[2 * k + 1])
    A(d15[8])
    for k in range(4):
        b = 32 + 16 * k
        A(mf(vr(8), vr(b), vr(b + 4), vr(8) if k else 0))
        A(mf(vr(12), vr(b), vr(b + 8), vr(12) if k else 0))
        A(mf(vr(248), vr(b + 12), vr(b + 4), vr(248) if k else 0))
    A(check(fl2, CMPF, 2))
    kvs = [A(f"buffer_store_dwordx4 {vr(d)}, {va}, {WS}, 0 offen sc1") for d, va in ((8, "v23"), (12, "v24"), (248, "v25"))]
    A(stamp("kv"))

    HBk = lambda k, tt: vr(104 + 16 * k + 4 * tt) if k < 9 else ar(8 * ((k - 9) % 11) + 4 * tt)
    fr = []
    for u in range(9):
        for f in range(36):
            k, T = 4 * u + f // 9, f % 9
            acc = 32 + 8 * T
            mm = lambda a, acc=acc, k=k: [mf(vr(acc + 4 * tt), a, HBk(k, tt), vr(acc + 4 * tt) if k else 0) for tt in range(2)]
            fr.append((13 + u, f == 0, b128((13 + u) % 3, f), mm))
    SB, bar, bn = gemm(fr, opt.get("laB", 3), 4, 88, first_barrier=False)
    for St in range(14, 20):
        for d, it in enumerate(dma_items(St + 2)): SB.after(bar[St] + dstart + dstep * d, it)
    for St in range(14, 22): bn[St].deps += dma_of[St]
    sq = Seq(tA)
    for k in range(9, 36):
        for tt in range(2):
            pre, so, lo = sq.at(sHR[k // 9], (2 * (k % 9) + tt) * 1024)
            it = pre + [I(f"buffer_load_dwordx4 {HBk(k, tt)}, v1, {WS}, {so} offen{off(lo)} sc1")]
            if not opt.get("nohld"): SB.after(1 + 3 * (2 * (k - 9) + tt) if k < 20 else 18 * (k - 11) + 18 + 6 * tt, it)
    bn[14].deps += kvs
    SB.after(bar[14] + 1, signal([f"s_lshl_b32 {sF}, {sJ}, 5", f"s_add_u32 {sF}, {sF}, {sM}", f"s_lshl_b32 {sF}, {sF}, 2", f"s_add_u32 {sF}, {sF}, {F3}"]))
    def val(h, i): return (i & 3) == h or i in (4 * h + 2, 4 * h + 3)
    adr = [f"v_and_b32 v26, 15, v0", f"v_lshrrev_b32 v29, 4, v0",
           f"s_lshl_b32 {tB}, {sW}, 5", f"v_add_u32 v28, {tB}, v26", f"v_mul_u32_u24 v28, 296, v28", f"v_add_u32 v28, {S3}, v28",
           f"v_lshl_add_u32 v13, v29, 4, v28", f"v_and_b32 v30, 1, v29", f"v_mul_u32_u24 v30, 72, v30", f"v_add3_u32 v14, v28, v30, 64",
           f"v_and_b32 v28, 3, v0", f"v_subrev_u32 v28, 1, v28", f"v_max_i32 v28, 0, v28", f"v_mad_u32_u24 v28, v29, 3, v28",
           f"v_lshlrev_b32 v28, 3, v28", f"v_add_u32 v28, {CB}, v28", f"v_mov_b32 v30, {CB + 31 * 8}",
           setmask("s[40:41]", lanemask(lambda l: val(0, l & 15))), f"v_cndmask_b32 v8, v30, v28, s[40:41]",
           setmask("s[42:43]", lanemask(lambda l: val(1, l & 15))), f"v_cndmask_b32 v9, v30, v28, s[42:43]",
           f"v_add_u32 v28, 96, v28",
           setmask("s[40:41]", lanemask(lambda l: l < 32 and val(l >> 4, l & 15))), f"v_cndmask_b32 v12, v30, v28, s[40:41]",
           f"v_lshlrev_b32 v28, 3, v26", f"v_add_u32 v28, {CB + 96}, v28",
           setmask("s[42:43]", 0xffff), f"v_cndmask_b32 v10, v30, v28, s[42:43]",
           setmask("s[40:41]", 0xffff0000), f"v_cndmask_b32 v11, v30, v28, s[40:41]",
           f"s_lshr_b32 s40, {sW}, 1", f"s_lshl_b32 s40, s40, 10", f"s_and_b32 s41, {sW}, 1", f"s_lshl_b32 s41, s41, 3", f"s_add_u32 s40, s40, s41",
           f"s_add_u32 s40, s40, {FA}", f"v_add_u32 v16, s40, v1", f"v_add_u32 v18, {FA}, v1",
           f"v_and_b32 v28, 31, v0", f"v_lshlrev_b32 v28, 3, v28", f"v_lshrrev_b32 v30, 5, v0", f"v_lshl_add_u32 v28, v30, 2, v28",
           f"s_lshl_b32 s40, {sW}, 8", f"s_add_u32 s40, s40, {CB}", f"v_add_u32 v17, s40, v28",
           f"s_bfe_u32 s40, {sJ}, 0x20001", f"s_lshl_b32 s40, s40, 8", f"s_and_b32 s41, {sJ}, 1", f"s_lshl_b32 s41, s41, 3", f"s_add_u32 s40, s40, s41",
           f"v_lshlrev_b32 v28, 4, v26", f"v_lshl_add_u32 v28, v29, 2, v28", f"v_add_u32 v28, s40, v28", f"v_cmp_gt_u32 vcc, 32, v0",
           f"v_cndmask_b32 v15, {OOB}, v28, vcc",
           f"v_add_u32 v19, {S3}, v1", f"s_and_b32 s41, {sW}, 1", f"s_mul_i32 s40, s41, 18432", f"v_add_u32 v20, s40, v19",
           f"v_mul_u32_u24 v28, 1152, v26", f"v_lshl_add_u32 v21, v29, 4, v28", f"v_lshl_add_u32 v22, v29, 3, v28",
           [f"s_cmp_lt_u32 {sW}, 2", f"s_cselect_b32 s40, 0, {OOB}"], f"v_add_u32 v22, s40, v22",
           f"s_lshl_b32 s40, {sM}, 2", f"s_add_u32 s40, s40, {sC}", f"s_mul_i32 s40, s40, {32 * 1152}", f"s_mul_i32 s42, {sN}, 288", f"s_add_u32 s40, s40, s42",
           f"s_lshl_b32 s42, {sW}, 6", f"s_add_u32 {sOUT}, s40, s42", f"s_mul_i32 s41, s41, 18432", f"s_add_u32 s40, s40, s41", f"s_add_u32 {sOUT8}, s40, 256",
           f"v_cmp_eq_u32 vcc, 0, v0", f"v_mov_b32 v25, {OOB}", f"v_cndmask_b32 v25, v25, 0, vcc",
           f"v_lshlrev_b32 v26, 2, v26", f"s_lshl_b32 {sFP}, {sJ}, 7", f"s_add_u32 {sFP}, {sFP}, {F3}"]
    SB.spread(adr, bar[14] + 3, bar[15] - 2)
    fl = f"buffer_load_dword v31, v26, {WS}, {sFP} offen sc1"
    SB.after(bar[15] + 1, fl)
    SB.after(bar[16] - 1, check(fl, CMPF, 3))
    gl = [[I(f"s_lshl_b32 {tB}, {sJ}, 2"), I(f"s_add_u32 {tB}, {tB}, {sW}"), I(f"s_lshl_b32 {tD}, {tB}, 13"), I(f"s_lshl_b32 {tB}, {tB}, 14"),
           I(f"s_add_u32 {tB}, {tB}, {KV1}"), I(f"s_add_u32 {tD}, {tD}, {KVC}")]]
    sq = Seq(tC_)
    for q in range(24):
        pre, so, lo = sq.at(tB, q * 1024) if q < 16 else sq.at(tD, (q - 16) * 1024)
        gl.append(pre + [I(f"buffer_load_dwordx4 {vr(104 + 4 * q)}, v1, {WS}, {so} offen{off(lo)} sc1")])
    SB.spread(gl, bar[16] + 1, bar[16] + 50)
    ad = []
    for q in range(1, 16): ad += [f"v_add_f32 v{104 + r}, v{104 + r}, v{104 + 4 * q + r}" for r in range(4)]
    for q in range(1, 8): ad += [f"v_add_f32 v{168 + r}, v{168 + r}, v{168 + 4 * q + r}" for r in range(4)]
    faw = [I("ds_write_b64 v16, v[104:105]"), I("ds_write_b32 v17, v168")]
    ad += ["v_cvt_pk_bf16_f32 v104, v104, v105", "v_cvt_pk_bf16_f32 v105, v106, v107", faw[0],
           "v_permlane32_swap_b32 v168, v170", "v_permlane32_swap_b32 v169, v171",
           setmask("s[40:41]", lanemask(lambda l: (l & 31) != 31)),
           "v_add_f32 v168, v168, v170", "v_add_f32 v169, v169, v171", "v_cvt_pk_bf16_f32 v168, v168, v169",
           "v_cndmask_b32 v168, 0, v168, s[40:41]", faw[1]]
    SB.spread(ad, bar[17] + 1, bar[18] - 4)
    bn[18].deps += faw
    o1 = [f"ds_read_b128 {vr(104)}, v18", f"ds_read_b128 {vr(108)}, v18 offset:1024",
          f"ds_read_b64 {vr(112, 2)}, v8", f"ds_read_b64 {vr(114, 2)}, v8 offset:256",
          f"ds_read_b64 {vr(116, 2)}, v9 offset:512", f"ds_read_b64 {vr(118, 2)}, v9 offset:768",
          f"ds_read_b64 {vr(120, 2)}, v10", f"ds_read_b64 {vr(122, 2)}, v11 offset:512", f"ds_read_b64 {vr(124, 2)}, v12 offset:256"]
    o2, o3, ost = [], [], []
    m16 = lambda d, a, b: f"v_mfma_f32_16x16x16_bf16 {vr(d)}, {vr(a, 2)}, {vr(b, 2)}, {vr(d)}"
    for tt in range(2):
        b = 128 + 10 * tt; t = 152 + 12 * tt
        o1 += [f"ds_read_b64 {vr(b + 2 * q, 2)}, v13{off((0, 8, 72, 80)[q] + 4736 * tt)}" for q in range(4)]
        o1 += [f"ds_read_b64 {vr(b + 8, 2)}, v14{off(4736 * tt)}"]
        o2.append([mf(vr(t + 8), vr(112), vr(b), 0), mf(vr(t), vr(104), vr(b), 0), mf(vr(t + 4), vr(108), vr(b + 4), 0),
                   mf(vr(t + 8), vr(116), vr(b + 4), vr(t + 8)), m16(t, 120, b + 8), m16(t + 4, 122, b + 8), m16(t + 8, 124, b + 8)])
        pre = []
        if tt == 0:
            pre = [f"s_lshl_b32 {tB}, {sM}, 2", f"s_add_u32 {tB}, {tB}, {sW}", f"s_mul_i32 {tB}, {tB}, {SLOT}", f"s_add_u32 {tB}, {tB}, {OB}",
                   f"s_lshr_b32 {tD}, {sJ}, 3", f"s_add_u32 {tD}, {tD}, 16", f"s_lshl_b32 {tD}, {tD}, 10", f"s_add_u32 {tD}, {tD}, {tB}",
                   f"s_lshl_b32 {tC_}, {sJ}, 10", f"s_add_u32 {tB}, {tB}, {tC_}", setmask("s[40:41]", 0xffff)]
        else:
            pre = [f"s_add_u32 {tB}, {tB}, 18432", f"s_add_u32 {tD}, {tD}, 18432"]
        s1 = I(f"buffer_store_dwordx4 {vr(t)}, v1, {WS}, {tB} offen sc1")
        s2 = I(f"buffer_store_dword v{t + 10}, v15, {WS}, {tD} offen sc1")
        ost += [s1, s2]
        o3 += pre + [f"v_add_f32 v{t + 8}, 0x358637bd, v{t + 8}", f"v_add_f32 v{t + 9}, 0x358637bd, v{t + 9}",
                     f"v_rcp_f32 v{t + 8}, v{t + 8}", f"v_rcp_f32 v{t + 9}, v{t + 9}"]
        o3 += [f"v_mul_f32 v{t + r}, v{t + 8 + (r >> 2)}, v{t + r}" for r in range(8)]
        o3 += [f"v_cndmask_b32 v{t + 8}, v{t + 9}, v{t + 8}, s[40:41]"]
        o3 += [f"v_cvt_pk_bf16_f32 v{t + q}, v{t + 2 * q}, v{t + 2 * q + 1}" for q in range(4)]
        o3 += [f"v_mul_f32 v{t + 10}, v{t + 8}, v{t + 10}", f"v_mul_f32 v{t + 11}, v{t + 8}, v{t + 11}", s1,
               f"v_cvt_pk_bf16_f32 v{t + 10}, v{t + 10}, v{t + 11}", s2]
    p = bar[18]
    SB.spread(o1, p + 1, p + 14)
    SB.spread([x for pair in zip(o2[0], o2[1]) for x in pair], p + 16, p + 36)
    SB.spread(o3, p + 40, p + 70)
    bn[20].deps += ost
    SB.after(bar[20] + 1, signal([f"s_lshl_b32 {sF}, {sM}, 5", f"s_add_u32 {sF}, {sF}, {sJ}", f"s_lshl_b32 {sF}, {sF}, 2", f"s_add_u32 {sF}, {sF}, {F4}"]))
    t8 = []
    for k in range(18):
        t8.append([I(f"s_add_u32 {tB}, {sWO}, {k * 9216 + 8192}"), I(f"buffer_load_dwordx4 {vr(104 + 4 * k)}, v1, {WS}, {tB} offen sc1")])
    t8 += [f"buffer_load_dwordx4 {vr(224)}, v21, {X}, {sOUT} offen", [f"s_add_u32 {tB}, {sOUT}, 18432", f"buffer_load_dwordx4 {vr(228)}, v21, {X}, {tB} offen"],
           f"buffer_load_dwordx2 {vr(232, 2)}, v22, {X}, {sOUT8} offen"]
    SB.spread(t8, bar[19] + 44, bar[20] + 30)
    misc = [f"s_lshl_b32 s40, {sC}, 7", f"s_add_u32 s40, s40, {RSH}", f"v_add_u32 v23, s40, v26", f"s_and_b32 s41, {sW}, 1", f"s_lshl_b32 s40, s41, 6",
            f"v_add_u32 v24, s40, v23", "ds_read_b32 v234, v23", "ds_read_b32 v235, v23 offset:64", "ds_read_b32 v236, v24",
            "v_accvgpr_read_b32 v28, a250", "v_accvgpr_read_b32 v29, a251", [f"s_cmp_eq_u32 s41, 0", "s_cselect_b64 s[42:43], -1, 0"],
            "v_cndmask_b32 v220, 0, v28, s[42:43]", "v_cndmask_b32 v221, 0, v29, s[42:43]",
            "v_cndmask_b32 v222, v28, 0, s[42:43]", "v_cndmask_b32 v223, v29, 0, s[42:43]",
            f"v_mul_f32 v237, 0xbfb8aa3b, v234", f"v_mul_f32 v238, 0xbfb8aa3b, v235", f"v_mul_f32 v239, 0xbfb8aa3b, v236",
            f"s_lshl_b32 {sFP}, {sM}, 7", f"s_add_u32 {sFP}, {sFP}, {F4}"]
    SB.spread(misc, bar[20] + 3, bar[20] + 40)
    fl = f"buffer_load_dword v31, v26, {WS}, {sFP} offen sc1"
    SB.after(bar[21] - opt.get("f4lead", 16), fl)
    SB.after(bar[21] + opt.get("f4chk", 2), check(fl, CMPF, 4))
    sq = Seq(tC_)
    od = []; odi = [[I(f"s_lshl_b32 {tB}, {sM}, 2"), I(f"s_add_u32 {tB}, {tB}, {sC}"), I(f"s_mul_i32 {tB}, {tB}, {SLOT}"),
                     I(f"s_add_u32 {tB}, {tB}, {OB}"), I(f"s_add_u32 {tB}, {tB}, {sLW}")]]
    for d in range(9):
        pre, so, lo = sq.at(tB, d * 1024)
        i = I(f"buffer_load_dwordx4 v1, {WS}, {so} offen{off(lo)} sc1 lds", m0=(sLW, S3 + d * 1024 - lo)); od.append(i)
        odi.append(pre + [i])
    SB.spread(odi, bar[21] + opt.get("f4chk", 2) + 1, bar[21] + opt.get("f4chk", 2) + 21)
    pst = []
    SB.after(600, f"s_lshl_b32 {tD}, {sM}, 2", f"s_add_u32 {tD}, {tD}, {sN}", f"s_lshl_b32 {tD}, {tD}, 2",
             f"s_add_u32 {sF}, {tD}, {sW}", f"s_add_u32 {sFP}, {tD}, {sC}",
             f"s_lshl_b32 {tA}, {sF}, 2", f"s_add_u32 {tA}, {tA}, {sC}", f"s_mul_i32 {tA}, {tA}, 9216", f"s_add_u32 {tA}, {tA}, {PART}",
             f"s_mul_i32 {tD}, {sFP}, {SLOT}", f"s_add_u32 {tD}, {tD}, {PART}",
             f"s_lshl_b32 {sF}, {sF}, 5", f"s_add_u32 {sF}, {sF}, {sC}", f"s_lshl_b32 {sF}, {sF}, 2", f"s_add_u32 {sF}, {sF}, {F5}",
             f"s_lshl_b32 {sFP}, {sFP}, 7", f"s_add_u32 {sFP}, {sFP}, {F5}", "v_and_b32 v26, 12, v26")
    sq = Seq(tC_)
    late = []
    for T in range(9):
        b = 32 + 8 * T
        its = [f"v_cvt_pk_bf16_f32 v{b + q}, v{b + 2 * q}, v{b + 2 * q + 1}" for q in range(4)]
        pre, so, lo = sq.at(tA, T * 1024)
        s_ = I(f"buffer_store_dwordx4 {vr(b)}, v1, {WS}, {so} offen{off(lo)} sc1"); pst.append(s_)
        q0 = 2 * (315 + T) + 5
        if q0 + 1 <= 647:
            SB.after(q0, its[:3]); SB.after(q0 + 1, its[3:], pre + [s_])
        else: late.append(its + pre + [s_])
    SB.emit(P)
    for x in late: A(x)
    A(stamp("B_end"))
    A(need(od))
    A("s_barrier")

    ST = Stream()
    NBK = 4
    for k in range(18):
        r = 12 * (k % NBK)
        for tt in range(2):
            for x in range(2):
                d = 176 + 8 * tt + 4 * x
                ST.mfma(mf(vr(d), ar(104 + 72 * x + 4 * k), ar(r + 4 * tt), vr(d) if k else 0))
        ST.mfma(mf(vr(192), vr(104 + 4 * k), ar(r + 8), vr(192) if k else 0))
    for k in range(18):
        r = 12 * (k % NBK); pos = 5 * (k - (NBK - 1))
        rs = [f"ds_read_b128 {ar(r)}, v19{off(k * 1024)}", f"ds_read_b128 {ar(r + 4)}, v19{off(18432 + k * 1024)}", f"ds_read_b128 {ar(r + 8)}, v20{off(k * 1024)}"]
        for q, t in enumerate(rs): ST.after(pos + q if pos >= 0 else -1, t)
    ST.after(opt.get("f5sig", 30), need(pst), f"buffer_store_dword v7, v25, {WS}, {sF} offen sc1")
    fl = f"buffer_load_dword v31, v26, {WS}, {sFP} offen sc1"
    ST.after(opt.get("f5ld", 80), fl)
    ST.emit(P)
    A(stamp("s_end"))
    A(check(fl, CMPF, 5))
    A(f"s_lshl_b32 {tA}, {sW}, 11\n s_add_u32 {tA}, {tA}, {tD}")
    for cp in range(4):
        A(f"s_add_u32 {tB}, {tA}, {cp * 9216}\n s_add_u32 {tC_}, {tD}, {cp * 9216 + 8192}")
        for x in range(2): A(f"buffer_load_dwordx4 {vr(32 + 12 * cp + 4 * x)}, v1, {WS}, {tB} offen{off(1024 * x)} sc1")
        A(f"buffer_load_dwordx4 {vr(40 + 12 * cp)}, v1, {WS}, {tC_} offen sc1")
    for cp in range(4):
        for tt in range(2):
            for x in range(2):
                d = 200 + 8 * tt + 4 * x
                A(mf(vr(d), SEL[tt], vr(32 + 12 * cp + 4 * x), vr(d) if cp else 0))
        A(mf(vr(216), vr(220), vr(40 + 12 * cp), vr(216) if cp else 0))
    A(stamp("sum"))

    def gate(F, Sa, XR, n, rs, tmp):
        for e in range(n): A(f"v_mul_f32 v{tmp + e}, v{rs + 3}, v{F + e}")
        for e in range(n): A(f"v_exp_f32 v{tmp + e}, v{tmp + e}")
        for e in range(n): A(f"v_mul_f32 v{F + e}, v{rs}, v{F + e}")
        for e in range(n): A(f"v_add_f32 v{tmp + e}, 1.0, v{tmp + e}")
        for e in range(n): A(f"v_rcp_f32 v{tmp + e}, v{tmp + e}")
        for e in range(n): A(f"v_mul_f32 v{F + e}, v{Sa + e}, v{F + e}")
        for e in range(n):
            A(f"v_lshlrev_b32 v{Sa + e}, 16, v{XR + e // 2}" if e % 2 == 0 else f"v_and_b32 v{Sa + e}, 0xffff0000, v{XR + e // 2}")
        for e in range(n): A(f"v_fma_f32 v{F + e}, v{F + e}, v{tmp + e}, v{Sa + e}")
        for q in range(n // 2): A(f"v_cvt_pk_bf16_f32 v{XR + q}, v{F + 2 * q}, v{F + 2 * q + 1}")
    gate(200, 176, 224, 8, 234, 80)
    A(f"buffer_store_dwordx4 {vr(224)}, v21, {OUT}, {sOUT} offen")
    gate(208, 184, 228, 8, 235, 88)
    A(f"s_add_u32 {tB}, {sOUT}, 18432")
    A(f"buffer_store_dwordx4 {vr(228)}, v21, {OUT}, {tB} offen")
    gate(216, 192, 232, 4, 236, 96)
    A(f"buffer_store_dwordx2 {vr(232, 2)}, v22, {OUT}, {sOUT8} offen")
    if opt.get("stamps"):
        A(stamp("end"))
        for k in range(len(stamps)): A(f"v_writelane_b32 v255, s{SREG[k]}, {k}")
        A(f"""s_lshl_b32 s40, s2, 2
              s_add_u32 s40, s40, {sW}
              s_lshl_b32 s40, s40, 8
              s_add_u32 s40, s40, {STAMP}
              v_lshlrev_b32 v0, 2, v0
              buffer_store_dword v255, v0, {WS}, s40 offen""")
    A("L_end:")
    return finalize(P, verbose=opt.get("verbose", True)), stamps


HEAD = open(os.path.join(os.path.dirname(os.path.abspath(__file__)), "..", "cdna_kernels", KN + ".s.ref")).read().split("; Override launch")[0]


def wrap(body):
    return f"""{HEAD}; One launch, 256 workgroups (one per CU); hand-offs between workgroups go through d_ws.
; @launch grid=(256,1,1) block=(256,1,1) lds=163840
.amdgcn_target "amdgcn-amd-amdhsa--gfx950"
.text
.globl {KN}_kernel
.p2align 8
.type {KN}_kernel,@function
{KN}_kernel:
{body}
s_endpgm
.section .rodata,"a"
.p2align 6
.amdhsa_kernel {KN}_kernel
  .amdhsa_next_free_vgpr 512
  .amdhsa_next_free_sgpr 102
  .amdhsa_accum_offset 256
  .amdhsa_group_segment_fixed_size 0
  .amdhsa_kernarg_size 80
  .amdhsa_user_sgpr_count 2
  .amdhsa_user_sgpr_kernarg_segment_ptr 1
  .amdhsa_system_sgpr_workgroup_id_x 1
.end_amdhsa_kernel
"""


if __name__ == "__main__":
    import json
    out = sys.argv[1]
    opt = {}
    for a in sys.argv[2:]:
        k, v = a.split("="); opt[k] = int(v)
    body, stamps = build(opt)
    open(out, "w").write(wrap(body))
    json.dump(stamps, open(out + ".json", "w"))
```

```python
import sys, os
sys.path.insert(0, os.path.dirname(os.path.abspath(__file__)))
from asm import I, Prog, Stream, need, finalize, atomize, Weaver

KN = "recurrent_scan__linear_kernel_hedgehog__dense_activation_relu__prompt"

SLOT = 36864
S3 = 110592
MISC = 148480
FS = MISC
PH = 156672
SPEC = PH + 2048
ZR, IR0, ET = SPEC, SPEC + 40, SPEC + 120
VIMG = MISC
FA = MISC
CB = MISC + 2048
RSH = 163328
HALF = 55296
MB = 1 << 20
F1, F2, F3, F4, F5 = 4096, 8192, 16384, 20480, 24576
WQ, WQP = 1 * MB, 132096
W2P, W2S = 4 * MB, 331776
WOP, WOS = 10 * MB, 165888
HB = 12 * MB
KV1, KVC = 32 * MB, 33 * MB
OB = 36 * MB
PART = 40 * MB
STAMP = 60 * MB
OOB = 0x40000000
X, WQKV, WPHI, RP, W1, OUT, DBG, WS = "s[4:7]", "s[8:11]", "s[12:15]", "s[16:19]", "s[20:23]", "s[28:31]", "s[32:35]", "s[36:39]"
sM, sC, sN, sJ, sW, sLW = "s60", "s61", "s62", "s63", "s64", "s65"
sW1, sST, sRPs, sRPd = "s68", "s69", "s70", "s71"
MK = ["s[72:73]", "s[74:75]", "s[76:77]", "s[78:79]"]
sFX, sFY, sHO, sCNT = "s80", "s81", "s82", "s83"
tDMA, tA, tB, tC_, tD = "s84", "s85", "s86", "s87", "s88"
sFS, sW2K = "s89", "s90"
sRPt = "s82"
sHR = [None, "s91", "s92", "s93"]
sF = "s94"
sFP = "s95"
sOUT, sOUT8, sWO = "s96", "s97", "s98"
sOUT2 = "s89"
LOG2E = 0x3FB8AA3B


def vr(b, n=4): return f"v[{b}:{b + n - 1}]"
def ar(b, n=4): return f"a[{b}:{b + n - 1}]"
def mf(d, a, b, c): return f"v_mfma_f32_16x16x32_bf16 {d}, {a}, {b}, {c}"


def lanemask(pred):
    m = 0
    for l in range(64):
        if pred(l): m |= 1 << l
    return m


def setmask(pair, m, op="s_mov_b32"):
    lo = int(pair[2:pair.index(":")])
    return [f"{op} s{lo}, {m & 0xffffffff:#x}", f"{op} s{lo + 1}, {m >> 32:#x}"]


class Seq:
    def __init__(self, tmp): self.tmp = tmp; self.cur = None

    def at(self, base, const):
        hi, lo = const & ~4095, const & 4095
        if hi == 0: return [], base, lo
        pre = []
        if self.cur != (base, hi):
            pre = [I(f"s_add_u32 {self.tmp}, {base}, {hi}")]; self.cur = (base, hi)
        return pre, self.tmp, lo


def off(n): return f" offset:{n}" if n else ""


def build(opt):
    P = Prog()
    A = P.add
    nlab = [0]
    stamps = []; cnt = [0]
    CLK = "s_memtime" if opt.get("cyc") else "s_memrealtime"
    SREG = [24, 25, 26, 27, 66] + list(range(46, 60))

    def stamp(name):
        sel = opt.get("stamps")
        if not sel: return []
        cnt[0] += 1
        if name not in ("setup", "end") and sel < 3 and (cnt[0] & 1) != (sel & 1): return []
        k = len(stamps); stamps.append(name)
        t = I(f"{CLK} s[100:101]"); t.kind = "salu"
        r = [I(f"s_mov_b32 s{SREG[k - 1]}, s100"), t]
        if name == "end": r += [I("s_waitcnt lgkmcnt(0)"), I(f"s_mov_b32 s{SREG[k]}, s100")]
        return r

    def check(load_text, cmp_text, ident):
        nlab[0] += 1; n = nlab[0]
        return [I(cmp_text), I(f"s_cbranch_vccz L_ok{n}"), I("@begin"),
                I(f"s_mov_b32 {sCNT}, 0x8000"), I(f"L_spin{n}:"), I(load_text), I("s_waitcnt vmcnt(0)"),
                I(cmp_text), I(f"s_cbranch_vccz L_ok{n}"), I(f"s_sub_u32 {sCNT}, {sCNT}, 1"), I(f"s_cbranch_scc0 L_spin{n}"),
                I(f"buffer_store_dword v1, off, {DBG}, 0 offset:{16 + 4 * ident} sc1"), I("s_waitcnt vmcnt(0)"),
                I("@end"), I(f"L_ok{n}:")]

    CMPF = "v_cmp_ne_u32 vcc, v7, v31"

    A("s_cmp_ge_u32 s2, 256")
    A("s_cbranch_scc1 L_end")
    if opt.get("stamps"): A(f"{CLK} s[100:101]"); stamps.append("start")
    A("s_load_dwordx16 s[40:55], s[0:1], 0")
    A("s_load_dwordx4 s[56:59], s[0:1], 64")
    tG, tI, tR, tC = "v44", "v45", "v46", "v47"
    a_, b_, c_, d_, e_ = "v48", "v49", "v50", "v51", "v52"
    t0, t1, t2, t3, t4, t5 = "s84", "s85", "s86", "s87", "s96", "s97"
    m0_, m1_, m2_ = "s[84:85]", "s[86:87]", "s[96:97]"
    sX = "s88"
    MAP = {0: """s_and_b32 s61, s2, 3
                 s_bfe_u32 s3, s2, 0x10002
                 s_lshr_b32 s60, s2, 5
                 s_lshl3_add_u32 s60, s3, s60""",
           1: """s_and_b32 s61, s2, 1
                 s_bfe_u32 s3, s2, 0x10005
                 s_lshl1_add_u32 s61, s61, s3
                 s_bfe_u32 s3, s2, 0x20001
                 s_lshr_b32 s60, s2, 6
                 s_lshl2_add_u32 s60, s3, s60"""}[opt.get("map", 0)]
    A(f"""v_lshrrev_b32 v1, 6, v0
          v_and_b32 v0, 63, v0
          v_readfirstlane_b32 s64, v1
          {MAP}
          s_bfe_u32 s62, s2, 0x20003
          s_lshl2_add_u32 s63, s61, s62
          s_mul_i32 s65, s64, 9216
          v_lshrrev_b32 {tG}, 4, v0
          v_and_b32 {tI}, 15, v0
          v_bfe_u32 {tR}, v0, 2, 2
          v_and_b32 {tC}, 3, v0
          v_lshlrev_b32 v1, 4, v0
          v_lshrrev_b32 v14, 3, v0
          v_mul_u32_u24 v14, 1152, v14
          v_and_b32 {e_}, 7, v0
          v_xor_b32 v15, {e_}, {tG}
          v_lshl_add_u32 v14, v15, 4, v14
          v_xor_b32 v15, 64, v14
          s_mul_i32 {sX}, {sM}, 147456
          s_mul_i32 {t0}, {sW}, 36864
          s_add_u32 {sX}, {sX}, {t0}
          s_mov_b32 s6, 2359296
          s_mov_b32 s7, 0x20000""")
    SU = []
    SU.append(f"""v_lshrrev_b32 {a_}, 3, {tI}
          v_mul_u32_u24 {a_}, 36864, {a_}
          v_and_b32 {b_}, 7, {tI}
          v_lshl_add_u32 {a_}, {b_}, 7, {a_}
          v_lshrrev_b32 {b_}, 1, {tI}
          v_xor_b32 {b_}, {b_}, {tG}
          v_lshl_add_u32 {a_}, {b_}, 4, {a_}
          v_add_u32 v29, {sLW}, {a_}
          v_xor_b32 v30, 64, v29""")
    for r in range(4): SU.append(setmask(MK[r], lanemask(lambda l: l == 20 * (l >> 4) + r)))
    SU.append(f"""v_mov_b32 v248, 0x3f803f80
          v_mov_b32 v249, 0x3f803f80
          v_mov_b32 v250, 0x3f803f80
          v_mov_b32 v251, 0x3f803f80
          v_mov_b32 v252, 1.0
          v_mov_b32 v253, 0x3f80
          v_cndmask_b32 {b_}, 0, v253, {MK[0]}
          v_cndmask_b32 {b_}, {b_}, v252, {MK[1]}
          v_cndmask_b32 {c_}, 0, v253, {MK[2]}
          v_cndmask_b32 {c_}, {c_}, v252, {MK[3]}
          v_accvgpr_write_b32 a248, 0
          v_accvgpr_write_b32 a249, 0
          v_accvgpr_write_b32 a250, {b_}
          v_accvgpr_write_b32 a251, {c_}
          v_accvgpr_write_b32 a252, 0
          v_accvgpr_write_b32 a253, 0""")
    SEL = [ar(250), ar(248)]
    SU.append(f"""s_and_b32 {t0}, {sW}, 1
          s_lshr_b32 {t1}, {sW}, 1
          s_lshl_b32 {t2}, {t0}, 4
          s_lshl2_add_u32 {t2}, {t1}, {t2}
          s_lshl_b32 {t1}, {t1}, 5
          s_lshl2_add_u32 {t1}, {t0}, {t1}
          s_and_b32 {t0}, {sJ}, 1
          s_lshl_b32 {t3}, {t0}, 6
          s_xor_b32 {t0}, {t0}, 1
          s_lshl_b32 {t0}, {t0}, 9
          s_movk_i32 {t4}, 9216
          s_mul_i32 {sW1}, {sJ}, 576
          v_bfe_u32 {a_}, v0, 3, 2
          v_lshrrev_b32 {b_}, 5, v0
          v_lshl_add_u32 {a_}, {b_}, 3, {a_}
          v_add_u32 {a_}, {t2}, {a_}
          v_lshlrev_b32 {b_}, 1, {tG}
          v_xor_b32 {b_}, {b_}, {e_}
          v_lshl_add_u32 {b_}, {b_}, 4, {t3}
          v_mad_u32_u24 v12, {a_}, {t4}, {b_}
          v_lshl_add_u32 {a_}, {tG}, 3, {tR}
          v_add_u32 {a_}, {t1}, {a_}
          v_and_b32 {b_}, 1, {tG}
          v_lshlrev_b32 {b_}, 1, {b_}
          v_xor_b32 {b_}, {b_}, {tC}
          v_lshl_add_u32 {b_}, {b_}, 4, {t0}
          v_mad_u32_u24 v13, {a_}, {t4}, {b_}""")
    SU.append(f"""s_lshl_b32 {t0}, {sW}, 7
          s_lshl_b32 s94, {sW}, 9
          s_mul_i32 s95, {sJ}, 1296""")
    for dd in range(2):
        o = f"v{53 + dd}"
        SU.append(f"v_add_u32 {a_}, {t0}, v0" if dd == 0 else f"v_add_u32 {a_}, 64, {a_}")
        SU.append(f"""v_mul_u32_u24 {b_}, 6554, {a_}
              v_lshrrev_b32 {b_}, 16, {b_}
              v_mad_i32_i24 {c_}, {b_}, -10, {a_}
              v_mul_u32_u24 {o}, 36, {b_}
              v_lshl_add_u32 {o}, {c_}, 2, {o}
              v_cmp_gt_u32 vcc, 9, {c_}
              v_cndmask_b32 {o}, {OOB}, {o}, vcc
              v_cmp_gt_u32 vcc, 36, {b_}
              v_cndmask_b32 {o}, {OOB}, {o}, vcc""")
    SU.append(f"""s_and_b32 {t0}, {sW}, 1
          s_lshl_b32 {t1}, {t0}, 3
          s_lshl_b32 {t0}, {t0}, 4
          s_lshr_b32 {t2}, {sW}, 1
          s_lshl2_add_u32 {t0}, {t2}, {t0}
          s_lshl_b32 {t2}, {sM}, 5
          s_add_u32 {t0}, {t0}, {t2}
          s_mul_i32 {t0}, {t0}, 3456
          s_mul_i32 {t2}, {sJ}, 72
          s_add_u32 {sFS}, {t0}, {t2}
          s_lshl_b32 {sW2K}, {sW}, 11
          s_movk_i32 {t2}, 3456
          v_add_u32 {a_}, {t1}, {tG}
          v_xor_b32 {a_}, {a_}, {tI}
          v_and_b32 {b_}, 3, {a_}
          v_min_u32 {c_}, 2, {b_}
          v_mul_u32_u24 {c_}, 1152, {c_}
          v_add_u32 {c_}, 64, {c_}
          v_cmp_eq_u32 vcc, 2, {b_}
          v_subrev_u32 {d_}, 32, {c_}
          v_cndmask_b32 {c_}, {c_}, {d_}, vcc
          v_cmp_eq_u32 vcc, 3, {b_}
          v_add_u32 {d_}, 4, {c_}
          v_cndmask_b32 {c_}, {c_}, {d_}, vcc""")
    for dd in range(2):
        o = f"v{55 + dd}"
        SU.append(f"v_lshrrev_b32 {a_}, 2, {a_}" if dd == 0 else f"v_xor_b32 {a_}, 1, {a_}")
        SU.append(f"""v_mul_u32_u24 {d_}, 1152, {a_}
              v_lshl_add_u32 {d_}, {b_}, 4, {d_}
              v_lshrrev_b32 {e_}, 1, {b_}
              v_lshl_add_u32 {e_}, {e_}, 2, {d_}
              v_cmp_eq_u32 vcc, 2, {a_}
              v_cndmask_b32 {d_}, {d_}, {e_}, vcc
              v_cmp_eq_u32 vcc, 3, {a_}
              v_cndmask_b32 {d_}, {d_}, {c_}, vcc
              v_mad_u32_u24 {o}, {tG}, {t2}, {d_}""")
    SU.append(f"v_add_u32 v56, {8 * 3456 - 1024}, v56")
    VA, VB = ["v2", "v3", "v8", "v9"], ["v10", "v11"]
    SU.append(f"""v_and_b32 {b_}, 1, {tG}
          v_lshl_add_u32 {a_}, {b_}, 2, {tR}
          v_lshrrev_b32 {c_}, 1, {a_}
          v_lshlrev_b32 {c_}, 5, {c_}
          v_lshl_add_u32 {c_}, {a_}, 7, {c_}
          v_lshl_add_u32 {c_}, {tC}, 3, {c_}
          v_lshrrev_b32 {d_}, 1, {tG}
          v_mul_u32_u24 {d_}, 9216, {d_}
          v_add_u32 v2, {c_}, {d_}
          v_xor_b32 v3, 32, v2
          v_xor_b32 v8, 64, v2
          v_xor_b32 v9, 96, v2
          v_lshrrev_b32 {a_}, 2, v0
          v_lshlrev_b32 {c_}, 6, {a_}
          v_lshl_add_u32 {c_}, {b_}, 5, {c_}
          v_lshl_add_u32 {c_}, {tC}, 3, {c_}
          v_add_u32 v10, 8192, {c_}
          v_xor_b32 v11, 32, v10
          v_add_u32 v4, {HALF}, v1
          v_mul_u32_u24 {a_}, 288, {a_}
          s_add_u32 {t0}, {sLW}, {S3}
          v_add_u32 {a_}, {t0}, {a_}
          v_lshl_add_u32 v17, {tC}, 4, {a_}
          v_lshl_add_u32 v18, {tC}, 3, {a_}
          v_add_u32 v18, 256, v18""")
    STASH = 188
    SU.append(f"""s_mov_b32 {t0}, 0
          s_mov_b32 {t1}, 0
          s_mov_b32 {t2}, 0
          s_cmp_eq_u32 {sM}, 9
          s_cmov_b32 {t0}, 2
          s_cmp_eq_u32 {sM}, 10
          s_cmov_b32 {t0}, 20
          s_cmov_b32 {t1}, 68
          s_cmov_b32 {t2}, 16
          s_cmp_ge_u32 {sM}, 14
          s_cselect_b64 {m2_}, -1, 0
          s_movk_i32 {t3}, 1152
          s_mov_b32 s3, -18
          v_mov_b32 v57, {OOB}""")
    for d in range(9):
        q = "v0"
        if d: SU.append(f"v_add_u32 {a_}, {64 * d}, v0"); q = a_
        SU.append(f"""v_mul_u32_u24 {b_}, 3641, {q}
              v_lshrrev_b32 {b_}, 16, {b_}
              v_mad_i32_i24 {c_}, {b_}, s3, {q}
              v_lshrrev_b32 {e_}, 4, {b_}
              v_mad_u32_u24 {d_}, {e_}, {t0}, {b_}
              v_bfe_u32 {e_}, {b_}, 2, 2
              v_mad_u32_u24 {d_}, {e_}, {t1}, {d_}
              v_bfe_u32 {e_}, {b_}, 1, 1
              v_mad_u32_u24 {d_}, {e_}, {t2}, {d_}""")
        if d % 4: SU.append(f"v_subrev_u32 {c_}, {(d % 4) * 64}, {c_}")
        SU.append(f"""v_lshlrev_b32 {c_}, 4, {c_}
              v_mad_u32_u24 {d_}, {d_}, {t3}, {c_}
              v_cndmask_b32 {d_}, {d_}, v{55 + min(d, 2)}, {m2_}
              v_accvgpr_write_b32 a{STASH + d}, {d_}""")
    g_, r_, cg_ = (lambda l: l >> 4), (lambda l: (l >> 2) & 3), (lambda l: l & 3)
    SU.append(f"""v_xor_b32 {a_}, {tG}, {tI}
          v_lshlrev_b32 {a_}, 4, {a_}
          v_lshl_add_u32 {a_}, {tI}, 8, {a_}
          v_add_u32 {a_}, {FS}, {a_}
          v_xor_b32 v25, 64, {a_}
          v_xor_b32 v26, 192, {a_}
          s_cmp_eq_u32 {sW}, 3
          s_cselect_b32 {t0}, 128, 0
          s_cselect_b64 {m2_}, -1, 0
          v_xor_b32 v24, {t0}, {a_}
          s_lshl_b32 s3, {sW}, 4
          s_add_u32 s99, s3, {PH}
          s_add_u32 s3, s3, {IR0}
          v_mov_b32 {e_}, {ZR}
          v_mul_u32_u24 {b_}, 24, {tR}
          v_add_u32 {b_}, {ET}, {b_}
          v_add_u32 {c_}, 8, {b_}
          v_cmp_gt_u32 vcc, 32, v0
          v_cndmask_b32 {b_}, {b_}, {c_}, vcc
          v_lshl_add_u32 {a_}, {tG}, 3, {tR}
          v_mad_u32_u24 {a_}, {a_}, 40, s99""")
    for h in range(2):
        hd = lambda l: int(8 * g_(l) + 4 * h + r_(l) >= 18)
        if h: SU.append(f"v_add_u32 {a_}, 160, {a_}")
        SU.append(setmask(m0_, lanemask(lambda l: cg_(l) == hd(l))))
        SU.append(setmask(m1_, lanemask(lambda l: cg_(l) == hd(l) + 2)))
        SU.append(f"s_cmp_eq_u32 {sW}, 3")
        SU.append(setmask(m0_, lanemask(lambda l: cg_(l) == 2 * (g_(l) & 1) + h), "s_cmov_b32"))
        SU.append(f"s_cmov_b64 {m1_}, 0")
        SU.append(f"""v_cndmask_b32 {c_}, {a_}, {b_}, {m2_}
              v_cndmask_b32 v{19 + h}, {e_}, {c_}, {m0_}
              v_cndmask_b32 v{21 + h}, {e_}, {a_}, {m1_}""")
    SU.append(setmask(m0_, lanemask(lambda l: (g_(l), cg_(l)) in ((0, 1), (1, 3)))))
    SU.append(setmask(m1_, lanemask(lambda l: (g_(l), cg_(l)) in ((2, 0), (3, 1)) and r_(l) < 2)))
    SU.append(f"""s_andn2_b64 {m0_}, {m0_}, {m2_}
          s_andn2_b64 {m1_}, {m1_}, {m2_}
          v_mad_u32_u24 {a_}, {tR}, 40, s99
          v_add_u32 {a_}, {32 * 40}, {a_}
          v_mad_u32_u24 {b_}, {tR}, 40, s3
          v_cndmask_b32 v23, {e_}, {a_}, {m0_}
          v_cndmask_b32 v23, v23, {b_}, {m1_}""")
    SU.append(setmask(m0_, lanemask(lambda l: l in (19, 32, 45))))
    SU.append(setmask(m1_, lanemask(lambda l: l in (29, 38, 51))))
    spw = I(f"ds_write_b32 {c_}, {b_}")
    SU.append(f"""v_cndmask_b32 {b_}, 0, v253, {m0_}
          v_cndmask_b32 {b_}, {b_}, v252, {m1_}
          v_lshlrev_b32 {c_}, 2, v0
          v_add_u32 {c_}, {SPEC}, {c_}
          v_or_b32 {d_}, {sW}, v0
          v_cmp_eq_u32 vcc, 0, {d_}
          v_cndmask_b32 v27, v57, 0, vcc""")
    SU.append(spw)
    for q in range(4):
        SU.append(f"v_accvgpr_write_b32 a{122 + (q >> 1) * 4 + (q & 1)}, 0")
    SU.append(f"""s_lshl2_add_u32 {t0}, {sM}, {sW}
          s_mul_i32 {t1}, {t0}, 57
          s_lshr_b32 {t1}, {t1}, 9
          s_mul_i32 {t2}, {t1}, 9
          s_sub_u32 {t2}, {t0}, {t2}
          s_xor_b32 {t1}, {t1}, {sN}
          s_and_b32 {t3}, {t1}, 1
          s_add_u32 {t2}, {t2}, {t3}
          s_cmp_eq_u32 {t2}, 9
          s_cmov_b32 {t2}, 0
          s_lshl2_add_u32 {t1}, {sC}, {t1}
          s_mul_i32 {t1}, {t1}, 9
          s_add_u32 {t1}, {t1}, {t2}
          s_mul_i32 {t1}, {t1}, {32 * 1152}
          s_mul_i32 {t2}, {sJ}, {W2S}
          s_add_u32 {t3}, {t0}, {252 - 28}
          s_movk_i32 {sRPt}, 1024
          s_mul_i32 {t4}, {t0}, 9
          s_cmp_ge_u32 {t0}, 28
          s_cmov_b32 {t4}, {t3}
          s_cmovk_i32 {sRPt}, 8192
          s_cmp_ge_u32 {t0}, 36
          s_cmovk_i32 {sRPt}, 1024
          s_lshl_b32 {t0}, {t4}, 10
          s_add_u32 {t2}, {t2}, {t0}
          s_add_u32 {t2}, {t2}, {W2P}
          s_mov_b32 {sRPs}, {OOB}
          s_mov_b32 {sRPd}, {OOB}
          s_cmp_le_u32 {sM}, 8
          s_cmov_b32 {sRPs}, {t1}
          s_cmov_b32 {sRPd}, {t2}
          s_lshl2_add_u32 {t3}, {sC}, {sW}
          s_mul_i32 {t1}, {t3}, {36 * 1152}
          s_mul_i32 {sWO}, {sN}, {WOS}
          s_add_u32 {sWO}, {sWO}, {WOP}
          s_mul_i32 {t3}, {t3}, 9216
          s_add_u32 {t2}, {sWO}, {t3}
          s_cmp_eq_u32 {sM}, 9
          s_cmov_b32 {sRPs}, {t1}
          s_cmov_b32 {sRPd}, {t2}
          s_mul_i32 {t1}, {sC}, {288 * 1152}
          s_add_u32 {t1}, {t1}, {16 * 1152}
          s_mul_i32 {t2}, {sC}, 9216
          s_add_u32 {t2}, {t2}, {sWO}
          s_add_u32 {t2}, {t2}, {16 * 9216}
          s_lshr_b32 {t0}, {sC}, 1
          s_or_b32 {t0}, {t0}, {sW}
          s_xor_b32 {t3}, {sM}, 10
          s_or_b32 {t0}, {t0}, {t3}
          s_cmp_eq_u32 {t0}, 0
          s_cmov_b32 {sRPs}, {t1}
          s_cmov_b32 {sRPd}, {t2}
          s_mul_i32 {t0}, {sN}, 288
          s_add_u32 {sRPs}, {sRPs}, {t0}
          s_add_u32 {t0}, {sFS}, {64 * 3456}
          s_cmp_ge_u32 {sM}, 14
          s_cmov_b32 {sRPs}, {t0}""")
    SU.append(f"""s_lshl_b32 {t0}, {sM}, 1
          s_cmp_eq_u32 {sW}, 2
          s_cmov_b32 {t0}, {sM}
          s_mul_i32 {t1}, {sW}, 36
          s_min_u32 {t1}, {t1}, 90
          s_add_u32 {t0}, {t0}, {t1}
          s_lshl_b32 {t0}, {t0}, 10
          s_mul_i32 {t1}, {sJ}, {WQP}
          s_add_u32 {t1}, {t1}, {WQ}
          s_add_u32 {sFX}, {t0}, {t1}
          s_add_u32 {sST}, {t1}, {sLW}
          s_add_u32 {sFY}, {sFX}, 1024
          s_cmp_eq_u32 {sW}, 2
          s_cmov_b32 {sFY}, {OOB}""")
    SU = atomize(SU)
    n0 = opt.get("n0", 40)
    A(SU[:n0])
    A("""s_waitcnt lgkmcnt(0)
         s_mov_b32 s4, s40
         s_mov_b32 s5, s41""")
    wsoff = opt.get("wsoff", 0) * MB
    if wsoff: A(f"s_add_u32 s58, s58, {wsoff}\n s_addc_u32 s59, s59, 0")
    nonce0 = A("s_load_dword s67, s[58:59], 0")
    A(stamp("karg"))
    SRD = []
    for base, src, n in ((20, 50, 5308416), (8, 42, 1990656), (12, 44, 20736), (36, 58, 268435456 - wsoff), (32, 56, 256), (28, 54, 2359296)):
        SRD.append(f"s_mov_b32 s{base}, s{src}\n s_mov_b32 s{base + 1}, s{src + 1}\n s_mov_b32 s{base + 2}, {n}\n s_mov_b32 s{base + 3}, 0x20000")
    SRD.append(f"""s_mov_b32 s18, 663552
          s_mov_b32 s19, 0x20000
          s_cmp_le_u32 {sM}, 8
          s_cselect_b32 s16, s52, s46
          s_cselect_b32 s17, s53, s47
          s_cmov_b32 s18, 5308416
          s_cmp_ge_u32 {sM}, 14
          s_cmov_b32 s16, s42
          s_cmov_b32 s17, s43
          s_cmov_b32 s18, 1990656""")

    w1seq = {}

    def w1dma(S, d):
        pre = []
        if (d == 0 and S > 0) or d == 5: pre = [I(f"s_add_u32 {sW1}, {sW1}, {32 * 9216}")]
        if d == 0: i = I(f"buffer_load_dwordx4 v13, {W1}, {sW1} offen lds", m0=(sLW, (S % 3) * SLOT + 8192))
        else:
            u = (d - 1) & 3
            i = I(f"buffer_load_dwordx4 v12, {W1}, {sW1} offen{off(128 * u)} lds", m0=(sLW, (S % 3) * SLOT + (d - 1) * 1024 - 128 * u))
        w1seq.setdefault(S, []).append(i)
        return pre + [i]

    pace = opt.get("pace", 64)
    xd = [[], []]; ops = []
    for sg in range(4):
        for d in range(9):
            i = I(f"buffer_load_dwordx4 v{14 + (sg & 1)}, {X}, {sX} offen{off(128 * d)} lds", m0=(sLW, sg * SLOT + 896 * d))
            xd[sg >> 1].append(i)
            ops.append(([I(f"s_add_u32 {sX}, {sX}, 9216")] if sg and not d else []) + [i])
    ops = [(o, None, pace) for o in ops]

    def ln(tt, su, nm, tmp, nset, lag):
        raw = 104 + 72 * tt
        L = [need(xd[tt])]
        if tt: L.append("v_add_u32 v29, 73728, v29\n v_add_u32 v30, 73728, v30")
        L += [f"ds_read_b128 {vr(raw + 4 * s)}, v{29 + (s & 1)}{off((s >> 1) * 1024)}" for s in range(18)]
        st = [I(mf(vr(su), vr(248), vr(raw + 4 * s), vr(su) if s else 0)) for s in range(18)]
        L += st
        L += [f"v_mul_f32 v{nm + r}, 0xbae38e39, v{su + r}" for r in range(4)]
        for s in range(18 + lag):
            if s < 18:
                D = tmp + 8 * (s % nset)
                L += [mf(vr(D), SEL[0], vr(raw + 4 * s), vr(nm)), mf(vr(D + 4), SEL[1], vr(raw + 4 * s), vr(nm))]
            if s >= lag:
                z = s - lag; D = tmp + 8 * (z % nset); dst = D if tt == 0 else 32 + 4 * z
                L += [f"v_cvt_pk_bf16_f32 v{dst + q}, v{D + 2 * q}, v{D + 2 * q + 1}" for q in range(4)]
                if tt == 0: L += [f"v_accvgpr_write_b32 a{4 * z + q}, v{D + q}" for q in range(4)]
        return L, st
    L0, st0 = ln(0, 32, 32, 64, 3, 2)
    L1, st1_ = ln(1, 96, 104, 112, 3, 2)
    gate = lambda st, d: st[17] if d == 0 else st[2 * d - 1]
    ops += [(w1dma(0, d), gate(st0, d), pace * (2 if d == 0 else 1)) for d in range(9)]
    small = [I(f"buffer_load_dwordx4 v{55 + dd}, {WQKV}, {sFS} offen{off(1024 * dd)} lds", m0=(sW2K, FS)) for dd in range(2)]
    small += [I(f"buffer_load_dword v{53 + dd}, {WPHI}, s95 offen lds", m0=("s94", PH + 256 * dd)) for dd in range(2)]
    ops += [(i, None, pace * 2 if k < 2 else pace // 2) for k, i in enumerate(small)]
    ops += [(w1dma(1, d), None, pace * (2 if d == 0 else 1)) for d in range(9)]
    ops += [(w1dma(2, d), gate(st1_, d), pace * (2 if d == 0 else 1)) for d in range(9)]
    if opt.get("pf"):
        PF = [f"s_and_b32 {t0}, {sM}, 7", f"s_lshl2_add_u32 {t0}, {t0}, {sN}", f"s_lshl2_add_u32 {t0}, {t0}, {sW}", f"s_mul_i32 {t0}, {t0}, 3",
              f"s_add_u32 {t0}, {t0}, 192", f"s_mul_i32 {t0}, {t0}, 9216", f"s_mul_i32 {t1}, {sC}, 2304", f"s_add_u32 s83, {t0}, {t1}",
              f"v_mul_u32_u24 {a_}, 3641, v0", f"v_lshrrev_b32 {a_}, 16, {a_}", f"v_mul_u32_u24 {b_}, {9216 - 18 * 128}, {a_}", f"v_lshl_add_u32 v58, v0, 7, {b_}",
              f"v_cmp_gt_u32 vcc, 54, v0", f"v_cndmask_b32 v58, {OOB}, v58, vcc"]
        SU += atomize(PF)
        ops.insert(opt["pf"], (I(f"buffer_load_dword a254, v58, {W1}, s83 offen"), SU[-1][-1], 2 * pace))
    W = Weaver(P, ops)
    W.run(SRD)
    W.run(SU[n0:])
    A(f"s_waitcnt lgkmcnt(0)\n s_or_b32 s84, s2, {sW}\n s_cmp_lg_u32 s84, 0\n s_cbranch_scc1 L_noepoch")
    P.begin()
    A(f"""s_mul_i32 s67, s67, 0x41c64e6d
          s_add_u32 s67, s67, 0x3039
          s_cmp_eq_u32 s67, 0
          s_cmov_b32 s67, 0x3039
          v_mov_b32 v31, s67
          buffer_store_dword v31, v27, {WS}, 0 offen sc1
          buffer_store_dword v31, v27, {DBG}, 0 offen sc1""")
    P.end()
    A("L_noepoch:")
    A(stamp("setup"))
    W.until(opt.get("xpre", 27))
    W.run(L0)
    A(stamp("ln0"))
    W.until(36)
    W.run(L1)
    W.until(opt.get("pre", 58))
    left = W.ops
    A(stamp("ln1"))

    dma_of = dict(w1seq)
    stseq = Seq(tDMA)

    def stream_dma(S, d):
        pre = []
        if S == 13 and d == 0:
            pre = [I(f"s_mul_i32 {sST}, {sJ}, {W2S}"), I(f"s_add_u32 {sST}, {sST}, {W2P}"), I(f"s_add_u32 {sST}, {sST}, {sLW}")]
            stseq.cur = None
        if S == 12:
            if d == 0:
                pre = [I(f"s_lshl_b32 s99, {sW}, 12"), I(f"s_sub_u32 {sST}, {sST}, s99"), I(f"s_mul_i32 s99, {sW}, 5120")]
                stseq.cur = None
            p2, so, lo = stseq.at(sST, 3 * SLOT + d * 1024)
            i = I(f"buffer_load_dwordx4 v1, {WS}, {so} offen{off(lo)} sc1 lds", m0=("s99", (S % 3) * SLOT + d * 1024 - lo))
        else:
            c = (S - 9 if S < 13 else S - 13) * SLOT + d * 1024
            p2, so, lo = stseq.at(sST, c)
            i = I(f"buffer_load_dwordx4 v1, {WS}, {so} offen{off(lo)} sc1 lds", m0=(sLW, (S % 3) * SLOT + d * 1024 - lo))
        dma_of.setdefault(S, []).append(i)
        return pre + p2 + [i]

    def dma_items(S):
        if S <= 8:
            r = [w1dma(S, d) for d in range(9)]; dma_of[S] = w1seq[S]; return r
        return [stream_dma(S, d) for d in range(5 if S == 12 else 9)]

    def ldsoff(o, lo, hi): return (lo, o) if o < HALF else (hi, o - HALF)

    def gemm(frags, la, nb, ring, first_barrier=True):
        S = Stream(); reads = []; bar = {}; barneed = {}
        for n, (st, first, rd, mm) in enumerate(frags):
            for t in mm(ar(ring + 4 * (n % nb))): S.mfma(t)
        for n, (st, first, rd, mm) in enumerate(frags):
            pos = 2 * (n - la)
            if first:
                bar[st] = max(pos, -1)
                if n or first_barrier:
                    barneed[st] = need()
                    S.after(bar[st], barneed[st], "s_barrier", stamp(f"B{st}"))
            rs = rd(ring + 4 * (n % nb))
            if isinstance(rs, tuple):
                if rs[0]: S.after(pos - 1 if pos >= 1 else -1, rs[0])
                rs = rs[1]
            rs = [I(t) for t in rs]
            reads.append(rs)
            for k, r in enumerate(rs): S.after(pos + k if pos >= 0 else -1, r)
        for n in range(0, len(frags) - 1, 2):
            S.mf[2 * n].deps += reads[n + 1]; S.virt[2 * n - 1] = 1
        return S, bar, barneed

    def b128(slot, f):
        base, o = ldsoff(slot * SLOT + f * 1024, "v1", "v4")
        return lambda r: [f"ds_read_b128 {ar(r)}, {base}{off(o)}"]

    XC = lambda tt, s: ar(4 * s) if tt == 0 else vr(32 + 4 * s)
    fr = []
    for St in range(9):
        used = set()
        for f in range(36):
            ks, T = divmod(f, 18); s = 2 * St + ks
            sl = (St % 3) * SLOT if St % 3 < 2 else 0
            if T < 16: base, o, hs = VA[T & 3], sl + 1024 * (4 * ks + (T >> 2)), 18432
            else: base, o, hs = VB[T & 1], sl + 18432 * ks, 9216
            tog = []
            if base not in used:
                used.add(base)
                if St % 3 == 2: tog = [f"v_add_u32 {base}, {2 * SLOT}, {base}"]
                elif St % 3 == 0 and St: tog = [f"v_subrev_u32 {base}, {2 * SLOT}, {base}"]
            rd = lambda r, base=base, o=o, hs=hs, tog=tog: (tog, [f"ds_read_b64_tr_b16 {ar(r, 2)}, {base}{off(o)}", f"ds_read_b64_tr_b16 {ar(r + 2, 2)}, {base}{off(o + hs)}"])
            acc = 104 + 16 * (T >> 1) + 8 * (T & 1)
            mm = lambda a, acc=acc, s=s: [mf(vr(acc + 4 * tt), a, XC(tt, s), vr(acc + 4 * tt) if s else 0) for tt in range(2)]
            fr.append((St, f == 0, rd, mm))
    TACC = [248, 8, 112, 128, 144, 160, 176]
    for f in range(126):
        if f < 72: tile, s = 2 * (f // 36) + (f & 1), (f % 36) >> 1
        elif f < 90: tile, s = 4, f - 72
        else: tile, s = 5 + (f & 1), (f - 90) >> 1
        St = 9 + f // 36
        acc = TACC[tile]
        mm = lambda a, acc=acc, s=s: [mf(vr(acc + 4 * tt), a, XC(tt, s), vr(acc + 4 * tt) if s else 0) for tt in range(2)]
        fr.append((St, f % 36 == 0, b128(St % 3, f % 36), mm))
    SA, bar, bn = gemm(fr, opt.get("laA", 6), 8, 72)
    dstart, vc = opt.get("dstart", 2), opt.get("vc", 4)

    def ring(S, St, tgt):
        p = bar[St] + dstart
        for d, it in enumerate(dma_items(tgt)):
            p = S.vm(it, p, 2 * vc if tgt <= 8 and d == 0 else vc) + 1
    p = 1
    for it, g, c in left: p = SA.vm(it, p, vc * c // pace) + 1
    for St in range(1, 13): ring(SA, St, St + 2)
    for St in range(13): bn[St].deps += dma_of[St]
    bn[0].deps += small + [spw]

    FB, FAa = 104, 128
    foldB = []
    for ty, regs in enumerate((("v19", "v20"), ("v21", "v22"), ("v23",))):
        for x in range(2):
            for h, va in enumerate(regs):
                foldB.append(I(f"ds_read_b64_tr_b16 {ar(FB + 8 * ty + 4 * x + 2 * h, 2)}, {va}{off(8 * x)}"))

    def fold_unit(pitch, dx, dy):
        rd = [I(f"ds_read_b128 {ar(FAa + 8 * ty + 4 * be)}, v{24 + ty}{off(pitch * be)}") for ty in range(3) for be in range(2)]
        mm = [[I(mf(vr(248 + 4 * be), ar(FAa + 8 * ty + 4 * be), ar(FB + 8 * ty + 4 * x), vr(248 + 4 * be) if ty else 0))
               for ty in range(3) for be in range(2)] for x in range(2)]
        cv = [[I(f"v_cvt_pk_bf16_f32 v{(248, 28)[x] + q}, v{248 + 2 * q}, v{249 + 2 * q}") for q in range(4)] for x in range(2)]
        st = [I(f"buffer_store_dwordx4 {vr((248, 28)[x])}, v1, {WS}, {(dx, dy)[x]} offen sc1") for x in range(2)]
        return rd, mm, cv, st
    rd, mm, cv, st1 = fold_unit(4096, sFX, sFY)
    SA.fill(foldB + rd, 0, 20)
    SA.spread(mm[1], 22, 28); SA.fill(cv[1], 31, 37)
    SA.spread(mm[0], 37, 43); SA.fill(cv[0], 46, 52)
    q = 52
    rpd = []
    for d in range(9):
        i = I(f"buffer_load_dwordx4 v{14 + (d & 1)}, {RP}, {sRPs} offen{off((d % 4) * 1024)} lds", m0=(sLW, S3 + (d // 4) * 4096)); rpd.append(i)
        p = SA.vm([I(f"v_accvgpr_read_b32 v{14 + (d & 1)}, a{STASH + d}"), i], max(p, 2), opt.get("rpc", 6)) + 1
    prp = p
    SA.vm(st1[1], 38, 1, force=True); SA.vm(st1[0], q, 1, force=True)

    q += 2
    sqm = [mf(vr(248 + 4 * tt), XC(tt, s), XC(tt, s), vr(248 + 4 * tt) if s else 0) for s in range(18) for tt in range(2)]
    SA.spread(sqm, q, q + 18)
    L = ["v_mov_b32 v16, 1.0"]
    for tt in range(2):
        L.append(f"v_cndmask_b32 v{28 + tt}, 0, v{248 + 4 * tt}, {MK[0]}")
        L += [f"v_cndmask_b32 v{28 + tt}, v{28 + tt}, v{248 + 4 * tt + r}, {MK[r]}" for r in range(1, 4)]
    q = SA.fill(L, q + 21, q + 33)[-1] + 1
    SA.after(q, f"v_mfma_f32_16x16x4_f32 {vr(248)}, v16, v28, 0"); SA.after(q + 1, f"v_mfma_f32_16x16x4_f32 {vr(252)}, v16, v29, 0")
    L = ["v_mov_b32 v16, 0x3727c5ac", "v_and_b32 v30, 15, v0", f"s_lshl_b32 {tA}, {sW}, 7", f"s_add_u32 {tA}, {tA}, {RSH}", f"v_lshl_add_u32 v30, v30, 2, {tA}"]
    for tt in range(2):
        L += [f"v_fmamk_f32 v{5 + tt}, v{248 + 4 * tt}, 0x3ae38e39, v16", f"v_rsq_f32 v{5 + tt}, v{5 + tt}"]
    L += ["ds_write_b32 v30, v5", "ds_write_b32 v30, v6 offset:64"]
    q = SA.fill(L, q + 5, q + 20)[-1] + 1
    rd, mm, cv, st2 = fold_unit(18432, tA, tB)
    bn[2].deps += rpd[:2]
    assert q <= bar[2] + 2, q
    SA.after(bar[2] + 2, f"s_cmp_lt_u32 {sM}, 14", "s_cbranch_scc1 L_nof2", "@begin",
             "v_bfe_u32 v16, v0, 3, 1", "v_mul_u32_u24 v16, 7168, v16", f"v_subrev_u32 v16, {FS - S3}, v16",
             [f"v_add_u32 v{24 + ty}, v16, v{24 + ty}" for ty in range(3)],
             f"s_cmp_eq_u32 {sW}, 2", f"s_movk_i32 {tA}, 4096", f"s_cmovk_i32 {tA}, 2048", f"s_add_u32 {tA}, {tA}, {sFX}", f"s_add_u32 {tB}, {sFY}, 4096",
             rd, mm[1], cv[1], st2[1], mm[0], cv[0], st2[0], "@end", "L_nof2:")
    RPA = 152
    rpr, rps = [], []
    sq = Seq(tC_)
    for T in range(9):
        va, o = ("v17", 64 * (T >> 1) + 8 * (T & 1)) if T < 8 else ("v18", 0)
        rpr += [I(f"ds_read_b64_tr_b16 {ar(RPA + 4 * T + 2 * h, 2)}, {va}{off(o + 4608 * h)}") for h in range(2)]
        pre = [I(f"s_add_u32 {sRPd}, {sRPd}, {sRPt}")] if T else []
        rps.append(pre + [I(f"buffer_store_dwordx4 {ar(RPA + 4 * T)}, v1, {WS}, {sRPd} offen sc1")])
    p0 = prp + opt.get("rp0", 30)
    if opt.get("verbose", 1): print("left", len(left), "repack loads end", prp, "rstd", q)
    SA.after(p0 - 1, need(rpd))
    pos = SA.fill(rpr, p0, p0 + 30)
    q = SA.chain(rps, lambda T: pos[2 * T + 1] + 4, vc)
    if opt.get("verbose", 1): print("repack stores", q)
    f1s, f1c = opt.get("f1s", 4), opt.get("f1c", 6)
    nl = f"buffer_load_dword v7, off, {DBG}, 0 sc1"
    SA.vm(nl, bar[f1s - 2] + 40, 2)
    SA.after(bar[f1s] - 2, check(nl, "v_cmp_eq_u32 vcc, 0, v7", 0))
    bn[f1s].deps += st1 + st2 + [x[-1] for x in rps]

    def signal(pre, lane="v27"): return pre + [f"buffer_store_dword v7, {lane}, {WS}, {sF} offen sc1"]
    SA.after(bar[f1s] + 1, signal([f"s_lshl_b32 {sF}, {sJ}, 5", f"s_add_u32 {sF}, {sF}, {sM}", f"s_lshl_b32 {sF}, {sF}, 2", f"s_add_u32 {sF}, {sF}, {F1}"]))
    f1a = [f"v_and_b32 v28, 15, v0", f"v_lshlrev_b32 v28, 2, v28", f"s_lshl_b32 {tA}, {sJ}, 7", f"v_add_u32 v28, {tA}, v28",
           f"v_and_b32 v29, 3, v0", f"v_lshlrev_b32 v29, 9, v29", f"s_lshl_b32 {tA}, {sN}, 7", f"v_add_u32 v29, {tA}, v29",
           f"v_bfe_u32 v30, v0, 2, 1", f"v_lshl_add_u32 v29, v30, 2, v29", f"v_add_u32 v29, 36, v29",
           setmask("s[40:41]", lanemask(lambda l: 16 <= l < 22)), f"v_cndmask_b32 v28, v28, v29, s[40:41]", f"s_movk_i32 {sFP}, {F1}"]
    f1a += [f"s_lshl2_add_u32 {tA}, {sM}, {sW}", f"s_lshl2_add_u32 {tA}, {tA}, {sC}", f"s_lshl_b32 {tA}, {tA}, 2"]
    for dl in range(4):
        f1a += [f"s_xor_b32 {tB}, {sN}, {dl}", f"s_add_u32 {tB}, {tB}, {tA}", f"s_mul_i32 {tB}, {tB}, 18432", f"s_add_u32 {sHO if dl == 0 else sHR[dl]}, {tB}, {HB}"]
    SA.fill(atomize(f1a), bar[3] + 2, bar[4] - 4)
    fl = f"buffer_load_dword v31, v28, {WS}, {sFP} offen sc1"
    SA.vm(fl, bar[f1c] - opt.get("f1lead", 30), 2, force=True)
    SA.after(bar[f1c] - 2, check(fl, CMPF, 1))
    hst = []; its = []; last = []
    sq = Seq(tA)
    for k in range(9):
        g0 = 104 + 16 * k
        for tt in range(2):
            src = [g0 + 4 * tt, g0 + 4 * tt + 2, g0 + 8 + 4 * tt, g0 + 10 + 4 * tt]
            its += [f"v_cvt_pk_bf16_f32 v{g0 + 4 * tt + q}, v{src[q]}, v{src[q] + 1}" for q in range(4)]
            its += [f"v_pk_max_i16 v{g0 + 4 * tt + q}, v{g0 + 4 * tt + q}, 0" for q in range(4)]
            last.append(len(its) - 1)
            pre, so, lo = sq.at(sHO, (2 * k + tt) * 1024)
            hst.append(pre + [I(f"buffer_store_dwordx4 {vr(g0 + 4 * tt)}, v1, {WS}, {so} offen{off(lo)} sc1")])
    pos = SA.fill(its, opt.get("he0", 624), opt.get("he1", 800))
    for k in range(9): assert pos[16 * k] >= 619 + 4 * k and pos[16 * k + 15] < [718, 720, 790, 826, 826, 830, 830, 830, 900][k], (k, pos)
    hs0, hsd = opt.get("hs0", 640), opt.get("hsd", 14)
    SA.chain(hst, lambda z: max(pos[last[z]] + 1, hs0 + hsd * z), vc)
    hst = [x[-1] for x in hst]
    SA.after(bar[f1c] - 1, f"s_lshl_b32 {tD}, {sW}, 11", f"s_add_u32 {tD}, {tD}, {sWO}")
    wol = []
    for k in range(18):
        for x in range(2):
            pre = [I(f"s_add_u32 {tC_}, {tD}, {k * 9216}")] if x == 0 else []
            wol.append(pre + [I(f"buffer_load_dwordx4 {ar(104 + 72 * x + 4 * k)}, v1, {WS}, {tC_} offen{off(x * 1024)} sc1")])
    pw_ = SA.chain(wol, bar[f1c] + 2, vc)
    if opt.get("verbose", 1): print("wo loads", pw_, "spill", len(SA.spill))
    HWs, HFs = tA, tB
    adr = [f"v_and_b32 v28, 15, v0", f"v_lshrrev_b32 v29, 4, v0", f"s_lshl_b32 {tA}, {sW}, 5", f"v_add_u32 v28, {tA}, v28",
           f"v_mul_u32_u24 v17, 296, v28", f"v_mul_u32_u24 v30, 72, v29", f"v_add3_u32 v17, v17, v30, {sFP}",
           f"v_mul_u32_u24 v18, 104, v28", f"v_lshl_add_u32 v18, v29, 3, v18", f"v_add_u32 v18, {VIMG}, v18"]
    adr.insert(0, f"s_mov_b32 {sFP}, {S3}")
    adr += [f"v_lshrrev_b32 v28, 2, v0", f"v_and_b32 v29, 3, v0",
            f"s_lshr_b32 {tA}, {sW}, 1", f"s_and_b32 {tB}, {sW}, 1",
            f"v_mul_u32_u24 v20, 296, v28", f"s_mul_i32 s40, {tA}, 72", f"s_lshl_b32 s41, {tB}, 3", f"s_add_u32 s40, s40, s41",
            f"s_add_u32 s40, s40, {S3 + 144}", f"v_lshl_add_u32 v19, v29, 4, v20", f"v_add_u32 v19, s40, v19",
            f"v_and_b32 v30, 1, v29", f"v_mul_u32_u24 v30, 72, v30", f"v_add_u32 v20, v20, v30", f"v_add_u32 v20, {S3 + 208}, v20",
            f"v_mul_u32_u24 v21, 104, v28", f"v_lshl_add_u32 v21, v29, 3, v21", f"s_lshl_b32 s40, {tA}, 5", f"s_add_u32 s40, s40, {VIMG}",
            [f"s_mov_b32 s41, {VIMG + 64}", f"s_cmp_eq_u32 {tB}, 0", f"s_cselect_b32 s42, s40, s41", f"s_cselect_b32 s43, s41, s40"],
            f"v_add_u32 v22, s43, v21", f"v_add_u32 v21, s42, v21"]
    def xsel(h, i): return 0 if i == h else 1 if i == 4 * h + 2 else 2 if i == 4 * h + 3 else None
    adr += [f"s_lshl2_add_u32 s40, {sJ}, {sW}", f"s_lshr_b32 s41, {sM}, 1", f"s_lshl3_add_u32 s40, s40, s41", f"s_and_b32 s42, {sM}, 1", f"s_lshl_b32 s42, s42, 3",
            f"s_lshl_b32 s41, s40, 9", f"s_add_u32 s41, s41, {KVC}", f"s_add_u32 s41, s41, s42",
            f"s_lshl_b32 s40, s40, 10", f"s_add_u32 s40, s40, {KV1}", f"s_add_u32 s40, s40, s42",
            f"v_add_u32 v23, s40, v1",
            f"v_and_b32 v28, 3, v0", f"v_subrev_u32 v28, 1, v28", f"v_max_i32 v28, 0, v28", f"v_lshrrev_b32 v29, 4, v0",
            f"v_mad_u32_u24 v28, v29, 3, v28", f"v_lshl_add_u32 v28, v28, 4, s41", f"v_mov_b32 v30, {OOB}",
            [f"s_cmp_lt_u32 {sW}, 2"] + setmask("s[42:43]", lanemask(lambda l: xsel(1, l & 15) is not None))
            + setmask("s[42:43]", lanemask(lambda l: xsel(0, l & 15) is not None), "s_cmov_b32"),
            f"v_cndmask_b32 v24, v30, v28, s[42:43]",
            f"v_add_u32 v28, 192, v28", f"v_and_b32 v29, 15, v0", f"v_lshl_add_u32 v29, v29, 4, s41", f"v_add_u32 v29, 192, v29",
            [f"s_mov_b64 s[42:43], 0", f"s_cmp_eq_u32 {sW}, 1"]
            + setmask("s[42:43]", lanemask(lambda l: l < 32 and xsel(l >> 4, l & 15) is not None), "s_cmov_b32"),
            f"v_cndmask_b32 v25, v30, v28, s[42:43]",
            [f"s_mov_b64 s[42:43], 0", f"s_cmp_eq_u32 {sW}, 0", "s_cmov_b32 s42, 0xffff", f"s_cmp_eq_u32 {sW}, 2", "s_cmov_b32 s42, 0xffff0000"],
            f"v_cndmask_b32 v25, v25, v29, s[42:43]",
            [f"s_bitcmp1_b32 {sW}, 0", "s_cselect_b64 s[42:43], -1, 0"],
            f"v_cndmask_b32 v28, v23, v24, s[42:43]", f"v_cndmask_b32 v24, v24, v23, s[42:43]", f"v_mov_b32 v23, v28",
            f"v_cmp_eq_u32 vcc, 0, v0", f"v_cndmask_b32 v27, v30, 0, vcc",
            "v_accvgpr_read_b32 v28, a250", "v_accvgpr_read_b32 v29, a251", "v_accvgpr_write_b32 a252, v28", "v_accvgpr_write_b32 a253, v29",
            f"v_and_b32 v26, 3, v0", f"v_lshlrev_b32 v26, 2, v26",
            f"s_lshl2_add_u32 {sFP}, {sM}, {sC}", f"s_lshl_b32 {sFP}, {sFP}, 3", f"s_add_u32 {sFP}, {sFP}, {sW}", f"s_lshl_b32 {sFP}, {sFP}, 4",
            f"s_add_u32 {sFP}, {sFP}, {F2}", f"s_lshl2_add_u32 {sF}, {sN}, {sFP}"]
    SA.fill(atomize(adr), bar[f1c] + 3, bar[8] + 40)

    pw = []

    def softmax(tt, EP):
        y = [TACC[f >> 2] + 4 * tt + (f & 3) for f in range(18)]
        L = [f"v_mul_f32 v28, {LOG2E:#x}, v{5 + tt}"]
        for op, d in (("max", 29), ("min", 30)):
            L.append(f"v_{op}3_f32 v{d}, v{y[0]}, v{y[1]}, v{y[2]}")
            for f in range(3, 17, 2): L.append(f"v_{op}3_f32 v{d}, v{d}, v{y[f]}, v{y[f + 1]}")
            L.append(f"v_{op}_f32 v{d}, v{d}, v{y[17]}")
        L += ["v_mul_f32 v29, v29, v28", "v_mul_f32 v30, v30, v28"]
        for f in range(18):
            L += [f"v_fma_f32 v{EP[f]}, v{y[f]}, v28, -v29", f"v_fma_f32 v{y[f]}, -v{y[f]}, v28, v30"]
        for f in range(18):
            L += [f"v_exp_f32 v{EP[f]}, v{EP[f]}", f"v_exp_f32 v{y[f]}, v{y[f]}"]
        L += [f"v_add_f32 v29, v{EP[0]}, v{EP[1]}", f"v_add_f32 v30, v{y[0]}, v{y[1]}"]
        for f in range(2, 18): L += [f"v_add_f32 v29, v29, v{EP[f]}", f"v_add_f32 v30, v30, v{y[f]}"]
        L += ["v_rcp_f32 v29, v29", "v_rcp_f32 v30, v30"]
        for f in range(18): L += [f"v_mul_f32 v{EP[f]}, v29, v{EP[f]}", f"v_mul_f32 v{y[f]}, v30, v{y[f]}"]
        for q in range(18):
            src = [EP[2 * q], EP[2 * q + 1]] if q < 9 else [y[2 * q - 18], y[2 * q - 17]]
            L.append(f"v_cvt_pk_bf16_f32 v{EP[q]}, v{src[0]}, v{src[1]}")
            if q & 1:
                w_ = I(f"ds_write_b64 v17, {vr(EP[q - 1], 2)}{off(4 * (q - 1) + 4736 * tt)}"); pw.append(w_); L.append(w_)
        return L
    EP0 = list(range(192, 200)) + list(range(208, 216)) + [224, 225]
    SA.fill(softmax(0, EP0), 831, 900)
    SA.emit(P)
    A(stamp("A_end"))
    W = Weaver(P, [(x, None, pace) for x in SA.spill])
    W.run(softmax(1, list(range(32, 50))))
    L = []
    for tt in range(2):
        for x, src in enumerate((160, 176)):
            b = src + 4 * tt
            L += [f"v_mul_f32 v{b + r}, v{5 + tt}, v{b + r}" for r in range(4)]
            L += [f"v_cvt_pk_bf16_f32 v{b}, v{b}, v{b + 1}", f"v_cvt_pk_bf16_f32 v{b + 1}, v{b + 2}, v{b + 3}"]
            pw.append(I(f"ds_write_b64 v18, {vr(b, 2)}{off(32 * x + 1664 * tt)}")); L.append(pw[-1])
        b = 146 + 4 * tt
        L += [f"v_mul_f32 v{b}, v{5 + tt}, v{b}", f"v_mul_f32 v{b + 1}, v{5 + tt}, v{b + 1}", f"v_cvt_pk_bf16_f32 v{b + 1}, v{b}, v{b + 1}", f"v_mov_b32 v{b}, 0x3f803f80"]
        pw.append(I(f"ds_write_b64 v18, {vr(b, 2)}{off(64 + 1664 * tt)}")); L.append(pw[-1])
    W.run(L)
    W.until(10 ** 6)
    A(need(hst)); A(signal([]))
    A(need(pw, dma_of[13]))
    A("s_barrier")
    A(stamp("X"))
    fl2 = f"buffer_load_dword v31, v26, {WS}, {sFP} offen sc1"
    d15 = dma_items(15)
    L = []
    for k in range(4):
        for u, va in enumerate(("v19", "v21", "v22", "v20")):
            pitch = 296 if va in ("v19", "v20") else 104
            L += [f"ds_read_b64_tr_b16 {vr(32 + 16 * k + 4 * u + 2 * h, 2)}, {va}{off((32 * k + 16 * h) * pitch)}" for h in range(2)]
    for k in range(4):
        b = 32 + 16 * k
        L += [mf(vr(8), vr(b), vr(b + 4), vr(8) if k else 0), mf(vr(12), vr(b), vr(b + 8), vr(12) if k else 0), mf(vr(248), vr(b + 12), vr(b + 4), vr(248) if k else 0)]
    kvs = []
    for d, va in ((8, "v23"), (12, "v24"), (248, "v25")):
        kvs.append(I(f"buffer_store_dwordx2 {vr(d, 2)}, {va}, {WS}, 0 offen sc1"))
        L += [f"v_cvt_pk_bf16_f32 v{d}, v{d}, v{d + 1}", f"v_cvt_pk_bf16_f32 v{d + 1}, v{d + 2}, v{d + 3}", kvs[-1]]
    W = Weaver(P, [(x, None, pace) for x in d15[:opt.get("d15", 5)]])
    W.run(L)
    d15 = [o[0] for o in W.ops] + d15[opt.get("d15", 5):]
    A(stamp("kv"))

    HBk = lambda k, tt: vr(104 + 16 * k + 4 * tt) if k < 9 else ar(8 * ((k - 9) % 9) + 4 * tt) if k < 27 else vr(176 + 8 * (k - 27) + 4 * tt)
    fr = []; done = {}
    for u in range(9):
        for f in range(36):
            k, T = 4 * u + f // 9, f % 9
            if u >= 7: T, k = divmod(36 * (u - 7) + f, 8); k += 28
            acc = 32 + 8 * T
            mm = lambda a, acc=acc, k=k: [mf(vr(acc + 4 * tt), a, HBk(k, tt), vr(acc + 4 * tt) if k else 0) for tt in range(2)]
            fr.append((13 + u, f == 0, b128((13 + u) % 3, f), mm))
            done[T] = 2 * len(fr) - 1
    SB, bar, bn = gemm(fr, opt.get("laB", 6), 8, 72, first_barrier=False)
    ob = opt.get("ob", 17)
    f2c = opt.get("f2c", 24)
    f3s, f3l, f3c = opt.get("f3s", 44), opt.get("f3l", 96), opt.get("f3c", 120)
    f4c = bar[20] + opt.get("f4c", -4)
    lat = opt.get("lat", 44)
    SB.vm(fl2, 1, 2)
    SB.after(f2c, check(fl2, CMPF, 2))
    ch = [[(it, 2, bar[15] - lat, vc) for it in d15]]
    for St in range(14, 20): ch[0] += [(it, bar[St] + dstart, bar[St + 2] - lat - vc * (8 - d), vc) for d, it in enumerate(dma_items(St + 2))]
    for St in range(14, 22): bn[St].deps += dma_of[St]
    sq = Seq(tA); hl = []
    for k in range(9, 36):
        for tt in range(2):
            pre, so, lo = sq.at(sHR[k // 9], (2 * (k % 9) + tt) * 1024)
            hl.append((pre + [I(f"buffer_load_dwordx4 {HBk(k, tt)}, v1, {WS}, {so} offen{off(lo)} sc1")],
                       f2c + 2 if k < 18 else 18 * (k - 8) if k < 27 else 164, (18 * k if k < 28 else 504 + 2 * (k - 28)) - lat, vc))
    ch.append(hl)
    sq = Seq(tC_); gl = []
    gdl = bar[ob] - 26 - lat
    for q in range(12):
        pre, so, lo = sq.at(tB, q * 1024) if q < 8 else sq.at(tD, (q - 8) * 1024)
        gl.append((pre + [I(f"buffer_load_dwordx4 {vr(104 + 4 * q)}, {'v1' if q < 8 else 'v23'}, {WS}, {so} offen{off(lo)} sc1")], f3c + 2, gdl - vc * (11 - q), vc))
    od = []
    for d in range(9):
        pre, so, lo = sq.at(tB, d * 1024) if d else ([], tB, 0)
        if not d: sq.cur = None
        od.append((pre + [I(f"buffer_load_dwordx4 v1, {WS}, {so} offen{off(lo)} sc1 lds", m0=(sLW, S3 + d * 1024 - lo))], max(f4c + 2, bar[ob + 1] + 2), 600, vc))
    for d in range(5):
        pre = [I(f"s_add_u32 {tD}, {tD}, 9216")] if d else []
        od.append((pre + [I(f"buffer_load_dwordx4 v1, {WS}, {tD} offen sc1 lds", m0=("s99", SLOT + 1024 * d))], bar[20] + dstart, 600, vc))
    ch.append(gl + od)
    od = [x[0][-1] for x in od]
    ch.append([(f"buffer_load_dwordx4 {vr(104)}, v21, {X}, {sOUT} offen", bar[ob + 1] + 20, 620, 2 * vc),
               (f"buffer_load_dwordx4 {vr(108)}, v21, {X}, {sOUT2} offen", 0, 620, 2 * vc), (f"buffer_load_dwordx2 {vr(112, 2)}, v22, {X}, {sOUT8} offen", 0, 620, vc)])
    pr, ph, pg, px = SB.edf(ch)
    if opt.get("verbose", 1): print("ring", pr, "\nh", ph, "\ngather/o", pg, "x", px)
    pg = pg[:12]
    def val(h, i): return (i & 3) == h or i in (4 * h + 2, 4 * h + 3)
    adr = [f"s_lshl2_add_u32 {tB}, {sJ}, {sW}", f"s_lshl_b32 {tD}, {tB}, 6", f"s_add_u32 s44, {tD}, {F3}", f"s_lshl2_add_u32 {sF}, {sM}, s44",
           f"s_lshl_b32 {tD}, {tB}, 12", f"s_lshl_b32 {tB}, {tB}, 13", f"s_add_u32 {tB}, {tB}, {KV1}", f"s_add_u32 {tD}, {tD}, {KVC}",
           f"v_and_b32 v16, 15, v0", f"v_lshrrev_b32 v29, 4, v0",
           f"s_mov_b32 s40, 28", f"s_cmp_eq_u32 {sW}, 1", "s_cmov_b32 s40, 18", f"s_cmp_eq_u32 {sW}, 3", "s_cmov_b32 s40, 12",
           f"v_and_b32 v28, 31, v0", f"v_cmp_gt_u32 vcc, s40, v28", f"v_cndmask_b32 v23, {OOB}, v1, vcc",
           f"v_lshlrev_b32 v28, 3, v28", f"v_lshrrev_b32 v30, 5, v0", f"v_lshl_add_u32 v28, v30, 2, v28",
           f"s_lshl_b32 s40, {sW}, 8", f"s_add_u32 s40, s40, {CB}", f"v_add_u32 v17, s40, v28",
           f"s_lshl_b32 s40, {sW}, 5", f"v_add_u32 v28, s40, v16", f"v_mul_u32_u24 v28, 296, v28", f"v_add_u32 v28, {S3}, v28",
           f"v_lshl_add_u32 v13, v29, 4, v28", f"v_and_b32 v30, 1, v29", f"v_mul_u32_u24 v30, 72, v30", f"v_add3_u32 v14, v28, v30, 64",
           f"v_and_b32 v28, 3, v0", f"v_subrev_u32 v28, 1, v28", f"v_max_i32 v28, 0, v28", f"v_mad_u32_u24 v28, v29, 3, v28",
           f"v_lshlrev_b32 v28, 3, v28", f"v_add_u32 v28, {CB}, v28", f"v_mov_b32 v30, {CB + 31 * 8}",
           setmask("s[40:41]", lanemask(lambda l: val(0, l & 15))), f"v_cndmask_b32 v8, v30, v28, s[40:41]",
           setmask("s[42:43]", lanemask(lambda l: val(1, l & 15))), f"v_cndmask_b32 v9, v30, v28, s[42:43]",
           f"v_add_u32 v28, 96, v28",
           setmask("s[40:41]", lanemask(lambda l: l < 32 and val(l >> 4, l & 15))), f"v_cndmask_b32 v12, v30, v28, s[40:41]",
           f"v_lshlrev_b32 v28, 3, v16", f"v_add_u32 v28, {CB + 96}, v28",
           setmask("s[42:43]", 0xffff), f"v_cndmask_b32 v10, v30, v28, s[42:43]",
           setmask("s[40:41]", 0xffff0000), f"v_cndmask_b32 v11, v30, v28, s[40:41]",
           f"s_bfe_u32 s40, {sJ}, 0x20001", f"s_lshl_b32 s40, s40, 8", f"s_and_b32 s41, {sJ}, 1", f"s_lshl3_add_u32 s40, s41, s40",
           f"v_lshlrev_b32 v28, 4, v16", f"v_lshl_add_u32 v28, v29, 2, v28", f"v_add_u32 v28, s40, v28", f"v_cmp_gt_u32 vcc, 32, v0",
           f"v_cndmask_b32 v15, {OOB}, v28, vcc",
           f"s_and_b32 s41, {sW}, 1", f"s_mul_i32 s41, s41, 18432", f"s_add_u32 s40, s41, {S3}", f"v_add_u32 v19, s40, v1",
           f"s_sub_u32 s40, {S3 + 18432}, s41", f"v_add_u32 v20, s40, v1",
           f"v_mul_u32_u24 v28, 1152, v16", f"v_lshl_add_u32 v21, v29, 4, v28", f"v_lshl_add_u32 v22, v29, 3, v28",
           f"s_cmp_lt_u32 {sW}, 2", f"s_cselect_b32 s40, 0, {OOB}", f"v_add_u32 v22, s40, v22",
           f"s_lshl2_add_u32 s40, {sM}, {sC}", f"s_mul_i32 s40, s40, {32 * 1152}", f"s_mul_i32 s42, {sN}, 288", f"s_add_u32 s40, s40, s42",
           f"s_add_u32 s43, s40, s41", f"s_add_u32 {sOUT8}, s43, 256", f"s_lshl_b32 s42, {sW}, 6", f"s_add_u32 {sOUT}, s43, s42",
           f"s_sub_u32 s40, s40, s41", f"s_add_u32 s40, s40, s42", f"s_add_u32 {sOUT2}, s40, 18432",
           f"s_lshr_b32 s40, {sW}, 1", f"s_lshl_b32 s40, s40, 10", f"s_and_b32 s41, {sW}, 1", f"s_lshl3_add_u32 s40, s41, s40",
           f"s_add_u32 s40, s40, {FA}", f"v_lshlrev_b32 v24, 2, v16", f"v_add_u32 v16, s40, v1", f"v_add_u32 v18, {FA}, v1"]
    adr = atomize(adr)
    SB.fill(adr[:4], 1, 8)
    pos = SB.fill(adr[4:], 8, opt.get("adr1", 90))
    SB.after(f3s, need(kvs)); SB.vm(signal([]), f3s, 2, force=True)
    fl = f"buffer_load_dword v31, v24, {WS}, s44 offen sc1"
    assert pos[-1] < f3l and f2c < f3l
    SB.vm(fl, f3l, 2, force=True)
    SB.after(f3c, check(fl, CMPF, 3))
    p = max(pg[-1] + lat, bar[ob] - 26)
    SELS = ar(250)
    for q in range(12):
        d = vr(248) if q < 8 else vr(252)
        SB.after(p + q // 2, mf(d, SELS, vr(104 + 4 * q), d if q & 7 else 0))
    faw = [I("ds_write_b64 v16, v[248:249]"), I("ds_write_b32 v17, v252")]
    ad = ["v_cvt_pk_bf16_f32 v248, v248, v249", "v_cvt_pk_bf16_f32 v249, v250, v251", faw[0],
          "v_permlane32_swap_b32 v252, v254", "v_permlane32_swap_b32 v253, v255",
          "v_add_f32 v252, v252, v254", "v_add_f32 v253, v253, v255", "v_cvt_pk_bf16_f32 v252, v252, v253", faw[1]]
    q = SB.fill(ad, p + 8, p + 24)[-1]
    assert q < bar[ob], (q, bar[ob])
    bn[ob].deps += faw
    o1 = [f"ds_read_b128 {vr(104)}, v18", f"ds_read_b128 {vr(108)}, v18 offset:1024",
          f"ds_read_b64 {vr(112, 2)}, v8", f"ds_read_b64 {vr(114, 2)}, v8 offset:256",
          f"ds_read_b64 {vr(116, 2)}, v9 offset:512", f"ds_read_b64 {vr(118, 2)}, v9 offset:768",
          f"ds_read_b64 {vr(120, 2)}, v10", f"ds_read_b64 {vr(122, 2)}, v11 offset:512", f"ds_read_b64 {vr(124, 2)}, v12 offset:256"]
    o2, o3, ost = [], [], []
    m16 = lambda d, a, b: f"v_mfma_f32_16x16x16_bf16 {vr(d)}, {vr(a, 2)}, {vr(b, 2)}, {vr(d)}"
    for tt in range(2):
        b = 128 + 10 * tt; t = 152 + 12 * tt
        o1 += [f"ds_read_b64 {vr(b + 2 * q, 2)}, v13{off((0, 8, 72, 80)[q] + 4736 * tt)}" for q in range(4)]
        o1 += [f"ds_read_b64 {vr(b + 8, 2)}, v14{off(4736 * tt)}"]
        o2.append([mf(vr(t + 8), vr(112), vr(b), 0), mf(vr(t), vr(104), vr(b), 0), mf(vr(t + 4), vr(108), vr(b + 4), 0),
                   mf(vr(t + 8), vr(116), vr(b + 4), vr(t + 8)), m16(t, 120, b + 8), m16(t + 4, 122, b + 8), m16(t + 8, 124, b + 8)])
        ost.append([I(f"buffer_store_dwordx4 {vr(t)}, v1, {WS}, s{42 + tt} offen sc1"), I(f"buffer_store_dword v{t + 10}, v15, {WS}, s{44 + tt} offen sc1")])
        L = [f"v_add_f32 v{t + 8}, 0x358637bd, v{t + 8}", f"v_add_f32 v{t + 9}, 0x358637bd, v{t + 9}",
             f"v_rcp_f32 v{t + 8}, v{t + 8}", f"v_rcp_f32 v{t + 9}, v{t + 9}"]
        L += [f"v_mul_f32 v{t + r}, v{t + 8 + (r >> 2)}, v{t + r}" for r in range(8)]
        L += [f"v_cndmask_b32 v{t + 8}, v{t + 9}, v{t + 8}, s[40:41]"]
        L += [f"v_cvt_pk_bf16_f32 v{t + q}, v{t + 2 * q}, v{t + 2 * q + 1}" for q in range(4)]
        L += [f"v_mul_f32 v{t + 10}, v{t + 8}, v{t + 10}", f"v_mul_f32 v{t + 11}, v{t + 8}, v{t + 11}", f"v_cvt_pk_bf16_f32 v{t + 10}, v{t + 10}, v{t + 11}"]
        o3.append(L)
    o0 = [f"s_lshl2_add_u32 s40, {sM}, {sW}", f"s_lshl_b32 {sF}, s40, 6", f"s_lshl2_add_u32 {sF}, {sJ}, {sF}", f"s_add_u32 {sF}, {sF}, {F4}",
          f"s_mul_i32 s40, s40, {SLOT}", f"s_add_u32 s40, s40, {OB}",
          f"s_lshr_b32 s44, {sJ}, 3", f"s_add_u32 s44, s44, 16", f"s_lshl_b32 s44, s44, 10", f"s_add_u32 s44, s44, s40", f"s_add_u32 s45, s44, 18432",
          f"s_lshl_b32 s42, {sJ}, 10", f"s_add_u32 s42, s42, s40", f"s_add_u32 s43, s42, 18432", "s_mov_b64 s[40:41], 0xffff",
          f"s_lshl2_add_u32 {tB}, {sM}, {sC}", f"s_lshl_b32 {sFP}, {tB}, 6", f"s_add_u32 {sFP}, {sFP}, {F4}",
          f"s_mul_i32 {tB}, {tB}, {SLOT}", f"s_add_u32 {tB}, {tB}, {OB}", f"s_add_u32 {tB}, {tB}, {sLW}",
          f"s_mul_i32 {tD}, {sW}, 46080", f"s_add_u32 {tD}, {tD}, {sWO}", f"s_add_u32 {tD}, {tD}, 8192", f"s_mul_i32 s99, {sW}, 5120"]
    SB.fill(o0, pg[-1] + 2, bar[ob])
    p = bar[ob]
    q = SB.fill(o1, p + 1, p + 22)[-1]
    SB.spread([x for pair in zip(o2[0], o2[1]) for x in pair], q + 3, q + 11)
    pos = SB.fill(o3[0] + o3[1], q + 13, q + opt.get("o3len", 48))
    n3 = len(o3[0])
    for z in range(4): q = SB.vm(ost[z >> 1][z & 1], pos[n3 * (z // 2 + 1) - 1] + 1 + 2 * (z & 1), 1, force=True)
    assert q < bar[ob + 1] + 20
    f4s = q + opt.get("f4s", 44)
    SB.after(f4s, need(ost[0], ost[1])); SB.vm(signal([]), f4s, 2, force=True)
    fl = f"buffer_load_dword v31, v24, {WS}, {sFP} offen sc1"
    SB.vm(fl, f4c - opt.get("f4l", 24), 2, force=True)
    SB.after(f4c, check(fl, CMPF, 4))
    misc = [f"s_lshl_b32 s40, {sC}, 7", f"s_and_b32 s41, {sW}, 1", f"s_lshl_b32 s42, s41, 6", f"s_add_u32 s40, s40, s42", f"s_add_u32 s40, s40, {RSH}",
            f"v_add_u32 v23, s40, v24", "v_xor_b32 v25, 64, v23", "ds_read_b32 v114, v23", "ds_read_b32 v115, v25",
            "v_accvgpr_read_b32 v28, a250", "v_accvgpr_read_b32 v29, a251", f"s_cmp_eq_u32 s41, 0", "s_cselect_b64 s[42:43], -1, 0",
            "v_cndmask_b32 v118, 0, v28, s[42:43]", "v_cndmask_b32 v119, 0, v29, s[42:43]",
            "v_cndmask_b32 v120, v28, 0, s[42:43]", "v_cndmask_b32 v121, v29, 0, s[42:43]",
            "v_mov_b32 v122, v118", "v_mov_b32 v123, v119",
            f"v_mul_f32 v116, 0xbfb8aa3b, v114", f"v_mul_f32 v117, 0xbfb8aa3b, v115",
            f"s_lshl2_add_u32 s40, {sM}, {sN}", f"s_lshl2_add_u32 s41, s40, {sW}", f"s_lshl2_add_u32 s40, s40, {sC}",
            f"s_lshl2_add_u32 s44, s41, {sC}", f"s_mul_i32 s44, s44, 9216", f"s_add_u32 s44, s44, {PART}",
            f"s_mul_i32 s45, s40, {SLOT}", f"s_add_u32 s45, s45, {PART}",
            f"s_lshl_b32 s41, s41, 7", f"s_lshl2_add_u32 s41, {sC}, s41", f"s_add_u32 {sF}, s41, {F5}",
            f"s_lshl_b32 s40, s40, 7", f"s_add_u32 s43, s40, {F5}"]
    q = SB.fill(atomize(misc), f4s + 3, bar[20])[-1]
    pst = []; late = []
    sq = Seq(tA)
    for T in range(9):
        b = 32 + 8 * T
        its = [f"v_cvt_pk_bf16_f32 v{b + q}, v{b + 2 * q}, v{b + 2 * q + 1}" for q in range(4)]
        pre, so, lo = sq.at("s44", T * 1024)
        s_ = I(f"buffer_store_dwordx4 {vr(b)}, v1, {WS}, {so} offen{off(lo)} sc1"); pst.append(s_)
        if T < 8:
            q = SB.fill(its, done[T] + 3, done[T] + 9)[-1]
            SB.vm(pre + [s_], max(q + 1, f4c + 1), vc, force=True)
        else: late.append(its + pre + [s_])
    if opt.get("verbose", 1): print("f4s", f4s, "f4c", f4c, "spill", len(SB.spill))
    assert not SB.spill
    SB.emit(P)
    for x in late: A(x)
    A(stamp("B_end"))
    A(need(od))
    A("s_barrier")

    ST = Stream()
    NBK = 4
    for k in range(18):
        r = 12 * (k % NBK)
        for z in range(2):
            for x in range(2):
                d = 176 + 8 * z + 4 * x
                ST.mfma(mf(vr(d), ar(104 + 72 * x + 4 * k), ar(r + 4 * z), vr(d) if k else 0))
        ST.mfma(mf(vr(192), ar(r + 8), ar(r), vr(192) if k else 0))
    for k in range(18):
        r = 12 * (k % NBK); pos = 5 * (k - (NBK - 1))
        rs = [f"ds_read_b128 {ar(r)}, v19{off(k * 1024)}", f"ds_read_b128 {ar(r + 4)}, v20{off(k * 1024)}", f"ds_read_b128 {ar(r + 8)}, v1{off(SLOT + k * 1024)}"]
        for q, t in enumerate(rs): ST.after(pos + q if pos >= 0 else -1, t)
    ST.after(opt.get("f5sig", 30), need(pst), f"buffer_store_dword v7, v27, {WS}, {sF} offen sc1")
    fl = f"buffer_load_dword v31, v26, {WS}, s43 offen sc1"
    ST.after(opt.get("f5ld", 80), fl)
    ST.emit(P)
    A(stamp("s_end"))
    A(check(fl, CMPF, 5))
    A(f"s_lshl_b32 {tA}, {sW}, 11\n s_add_u32 {tA}, {tA}, s45")
    for cp in range(4):
        A(f"s_add_u32 {tB}, {tA}, {cp * 9216}\n s_add_u32 {tC_}, s45, {cp * 9216 + 8192}")
        for x in range(2): A(f"buffer_load_dwordx4 {vr(32 + 12 * cp + 4 * x)}, v1, {WS}, {tB} offen{off(1024 * x)} sc1")
        A(f"buffer_load_dwordx4 {vr(40 + 12 * cp)}, v1, {WS}, {tC_} offen sc1")
    for cp in range(4):
        for z in range(2):
            for x in range(2):
                d = 200 + 8 * z + 4 * x
                A(mf(vr(d), vr(118 + 2 * z), vr(32 + 12 * cp + 4 * x), vr(d) if cp else 0))
        A(mf(vr(216), vr(118), vr(40 + 12 * cp), vr(216) if cp else 0))
    A(stamp("sum"))

    def gate(F, Sa, XR, n, rs, tmp):
        for e in range(n): A(f"v_mul_f32 v{tmp + e}, v{rs + 2}, v{F + e}")
        for e in range(n): A(f"v_exp_f32 v{tmp + e}, v{tmp + e}")
        for e in range(n): A(f"v_mul_f32 v{F + e}, v{rs}, v{F + e}")
        for e in range(n): A(f"v_add_f32 v{tmp + e}, 1.0, v{tmp + e}")
        for e in range(n): A(f"v_rcp_f32 v{tmp + e}, v{tmp + e}")
        for e in range(n): A(f"v_mul_f32 v{F + e}, v{Sa + e}, v{F + e}")
        for e in range(n):
            A(f"v_lshlrev_b32 v{Sa + e}, 16, v{XR + e // 2}" if e % 2 == 0 else f"v_and_b32 v{Sa + e}, 0xffff0000, v{XR + e // 2}")
        for e in range(n): A(f"v_fma_f32 v{F + e}, v{F + e}, v{tmp + e}, v{Sa + e}")
        for q in range(n // 2): A(f"v_cvt_pk_bf16_f32 v{XR + q}, v{F + 2 * q}, v{F + 2 * q + 1}")
    gate(200, 176, 104, 8, 114, 80)
    oc = ["", " sc1", " nt", " sc0 sc1", " sc1 nt"][opt.get("oc", 0)]
    A(f"buffer_store_dwordx4 {vr(104)}, v21, {OUT}, {sOUT} offen{oc}")
    gate(208, 184, 108, 8, 115, 88)
    A(f"buffer_store_dwordx4 {vr(108)}, v21, {OUT}, {sOUT2} offen{oc}")
    gate(216, 192, 112, 4, 114, 96)
    A(f"buffer_store_dwordx2 {vr(112, 2)}, v22, {OUT}, {sOUT8} offen{oc}")
    if opt.get("stamps"):
        A(stamp("end"))
        for k in range(len(stamps)): A(f"v_writelane_b32 v255, s{SREG[k]}, {k}")
        A(f"""s_lshl_b32 s40, s2, 2
              s_add_u32 s40, s40, {sW}
              s_lshl_b32 s40, s40, 8
              s_add_u32 s40, s40, {STAMP}
              v_lshlrev_b32 v0, 2, v0
              buffer_store_dword v255, v0, {WS}, s40 offen""")
    A("L_end:")
    return finalize(P, verbose=opt.get("verbose", True)), stamps


HEAD = open(os.path.join(os.path.dirname(os.path.abspath(__file__)), "..", "cdna_kernels", KN + ".s.ref")).read().split("; Override launch")[0]


def wrap(body):
    return f"""{HEAD}; One launch, 256 workgroups (one per CU); hand-offs between workgroups go through d_ws.
; @launch grid=(256,1,1) block=(256,1,1) lds=163840
.amdgcn_target "amdgcn-amd-amdhsa--gfx950"
.text
.globl {KN}_kernel
.p2align 8
.type {KN}_kernel,@function
{KN}_kernel:
{body}
s_endpgm
.section .rodata,"a"
.p2align 6
.amdhsa_kernel {KN}_kernel
  .amdhsa_next_free_vgpr 512
  .amdhsa_next_free_sgpr 102
  .amdhsa_accum_offset 256
  .amdhsa_group_segment_fixed_size 0
  .amdhsa_kernarg_size 80
  .amdhsa_user_sgpr_count 2
  .amdhsa_user_sgpr_kernarg_segment_ptr 1
  .amdhsa_system_sgpr_workgroup_id_x 1
.end_amdhsa_kernel
"""


if __name__ == "__main__":
    import json
    out = sys.argv[1]
    opt = {}
    for a in sys.argv[2:]:
        k, v = a.split("="); opt[k] = int(v)
    body, stamps = build(opt)
    open(out, "w").write(wrap(body))
    json.dump(stamps, open(out + ".json", "w"))
```

```python
import sys, os
sys.path.insert(0, os.path.dirname(os.path.abspath(__file__)))
from asm import I, Prog, Stream, need, finalize, atomize, Weaver

KN = "recurrent_scan__linear_kernel_hedgehog__dense_activation_relu__prompt"

SLOT = 36864
S3 = 110592
MISC = 148480
FS = MISC
PH = 156672
SPEC = PH + 2048
ZR, IR0, ET = SPEC, SPEC + 40, SPEC + 120
VIMG = MISC
FA = MISC
CB = MISC + 2048
RSH = 163328
HALF = 55296
MB = 1 << 20
F1, F2, F3, F4, F5 = 4096, 8192, 16384, 20480, 24576
WQ, WQP = 1 * MB, 132096
W2P, W2S = 4 * MB, 331776
WOP, WOS = 10 * MB, 165888
HB = 12 * MB
KV1, KVC = 32 * MB, 33 * MB
OB = 36 * MB
PART = 40 * MB
STAMP = 60 * MB
OOB = 0x40000000
X, WQKV, WPHI, RP, W1, OUT, DBG, WS = "s[4:7]", "s[8:11]", "s[12:15]", "s[16:19]", "s[20:23]", "s[28:31]", "s[32:35]", "s[36:39]"
sM, sC, sN, sJ, sW, sLW = "s60", "s61", "s62", "s63", "s64", "s65"
sW1, sST, sRPs, sRPd = "s68", "s69", "s70", "s71"
MK = ["s[72:73]", "s[74:75]", "s[76:77]", "s[78:79]"]
sFX, sFY, sHO, sCNT = "s80", "s81", "s82", "s83"
tDMA, tA, tB, tC_, tD = "s84", "s85", "s86", "s87", "s88"
sFS, sW2K = "s89", "s90"
sRPt = "s82"
sHR = [None, "s91", "s92", "s93"]
sF = "s94"
sFP = "s95"
sOUT, sOUT8, sWO = "s96", "s97", "s98"
sOUT2 = "s89"
LOG2E = 0x3FB8AA3B


def vr(b, n=4): return f"v[{b}:{b + n - 1}]"
def ar(b, n=4): return f"a[{b}:{b + n - 1}]"
def mf(d, a, b, c): return f"v_mfma_f32_16x16x32_bf16 {d}, {a}, {b}, {c}"


def lanemask(pred):
    m = 0
    for l in range(64):
        if pred(l): m |= 1 << l
    return m


def setmask(pair, m, op="s_mov_b32"):
    lo = int(pair[2:pair.index(":")])
    return [f"{op} s{lo}, {m & 0xffffffff:#x}", f"{op} s{lo + 1}, {m >> 32:#x}"]


class Seq:
    def __init__(self, tmp): self.tmp = tmp; self.cur = None

    def at(self, base, const):
        hi, lo = const & ~4095, const & 4095
        if hi == 0: return [], base, lo
        pre = []
        if self.cur != (base, hi):
            pre = [I(f"s_add_u32 {self.tmp}, {base}, {hi}")]; self.cur = (base, hi)
        return pre, self.tmp, lo


def off(n): return f" offset:{n}" if n else ""


def build(opt):
    P = Prog()
    A = P.add
    nlab = [0]
    stamps = []; cnt = [0]
    CLK = "s_memtime" if opt.get("cyc") else "s_memrealtime"
    SREG = [24, 25, 26, 27, 66] + list(range(46, 60))

    def stamp(name):
        sel = opt.get("stamps")
        if not sel: return []
        cnt[0] += 1
        if name not in ("setup", "end") and sel < 3 and (cnt[0] & 1) != (sel & 1): return []
        k = len(stamps); stamps.append(name)
        t = I(f"{CLK} s[100:101]"); t.kind = "salu"
        r = [I(f"s_mov_b32 s{SREG[k - 1]}, s100"), t]
        if name == "end": r += [I("s_waitcnt lgkmcnt(0)"), I(f"s_mov_b32 s{SREG[k]}, s100")]
        return r

    def check(load_text, cmp_text, ident):
        nlab[0] += 1; n = nlab[0]
        return [I(cmp_text), I(f"s_cbranch_vccz L_ok{n}"), I("@begin"),
                I(f"s_mov_b32 {sCNT}, 0x8000"), I(f"L_spin{n}:"), I(load_text), I("s_waitcnt vmcnt(0)"),
                I(cmp_text), I(f"s_cbranch_vccz L_ok{n}"), I(f"s_sub_u32 {sCNT}, {sCNT}, 1"), I(f"s_cbranch_scc0 L_spin{n}"),
                I(f"buffer_store_dword v1, off, {DBG}, 0 offset:{16 + 4 * ident} sc1"), I("s_waitcnt vmcnt(0)"),
                I("@end"), I(f"L_ok{n}:")]

    CMPF = "v_cmp_ne_u32 vcc, v7, v31"

    A("s_cmp_ge_u32 s2, 256")
    A("s_cbranch_scc1 L_end")
    if opt.get("stamps"): A(f"{CLK} s[100:101]"); stamps.append("start")
    A("s_load_dwordx16 s[40:55], s[0:1], 0")
    A("s_load_dwordx4 s[56:59], s[0:1], 64")
    tG, tI, tR, tC = "v44", "v45", "v46", "v47"
    a_, b_, c_, d_, e_ = "v48", "v49", "v50", "v51", "v52"
    t0, t1, t2, t3, t4, t5 = "s84", "s85", "s86", "s87", "s96", "s97"
    m0_, m1_, m2_ = "s[84:85]", "s[86:87]", "s[96:97]"
    sX = "s88"
    MAP = {0: """s_and_b32 s61, s2, 3
                 s_bfe_u32 s3, s2, 0x10002
                 s_lshr_b32 s60, s2, 5
                 s_lshl3_add_u32 s60, s3, s60""",
           1: """s_and_b32 s61, s2, 1
                 s_bfe_u32 s3, s2, 0x10005
                 s_lshl1_add_u32 s61, s61, s3
                 s_bfe_u32 s3, s2, 0x20001
                 s_lshr_b32 s60, s2, 6
                 s_lshl2_add_u32 s60, s3, s60"""}[opt.get("map", 0)]
    A(f"""v_lshrrev_b32 v1, 6, v0
          v_and_b32 v0, 63, v0
          v_readfirstlane_b32 s64, v1
          {MAP}
          s_bfe_u32 s62, s2, 0x20003
          s_lshl2_add_u32 s63, s61, s62
          s_mul_i32 s65, s64, 9216
          v_lshrrev_b32 {tG}, 4, v0
          v_and_b32 {tI}, 15, v0
          v_bfe_u32 {tR}, v0, 2, 2
          v_and_b32 {tC}, 3, v0
          v_lshlrev_b32 v1, 4, v0
          v_lshrrev_b32 v14, 3, v0
          v_mul_u32_u24 v14, 1152, v14
          v_and_b32 {e_}, 7, v0
          v_xor_b32 v15, {e_}, {tG}
          v_lshl_add_u32 v14, v15, 4, v14
          v_xor_b32 v15, 64, v14
          s_mul_i32 {sX}, {sM}, 147456
          s_mul_i32 {t0}, {sW}, 36864
          s_add_u32 {sX}, {sX}, {t0}
          s_mov_b32 s6, 2359296
          s_mov_b32 s7, 0x20000""")
    SU = []
    SU.append(f"""v_lshrrev_b32 {a_}, 3, {tI}
          v_mul_u32_u24 {a_}, 36864, {a_}
          v_and_b32 {b_}, 7, {tI}
          v_lshl_add_u32 {a_}, {b_}, 7, {a_}
          v_lshrrev_b32 {b_}, 1, {tI}
          v_xor_b32 {b_}, {b_}, {tG}
          v_lshl_add_u32 {a_}, {b_}, 4, {a_}
          v_add_u32 v29, {sLW}, {a_}
          v_xor_b32 v30, 64, v29""")
    for r in range(4): SU.append(setmask(MK[r], lanemask(lambda l: l == 20 * (l >> 4) + r)))
    SU.append(f"""v_mov_b32 v248, 0x3f803f80
          v_mov_b32 v249, 0x3f803f80
          v_mov_b32 v250, 0x3f803f80
          v_mov_b32 v251, 0x3f803f80
          v_mov_b32 v252, 1.0
          v_mov_b32 v253, 0x3f80
          v_cndmask_b32 {b_}, 0, v253, {MK[0]}
          v_cndmask_b32 {b_}, {b_}, v252, {MK[1]}
          v_cndmask_b32 {c_}, 0, v253, {MK[2]}
          v_cndmask_b32 {c_}, {c_}, v252, {MK[3]}
          v_accvgpr_write_b32 a248, 0
          v_accvgpr_write_b32 a249, 0
          v_accvgpr_write_b32 a250, {b_}
          v_accvgpr_write_b32 a251, {c_}
          v_accvgpr_write_b32 a252, 0
          v_accvgpr_write_b32 a253, 0""")
    SEL = [ar(250), ar(248)]
    SU.append(f"""s_and_b32 {t0}, {sW}, 1
          s_lshr_b32 {t1}, {sW}, 1
          s_lshl_b32 {t2}, {t0}, 4
          s_lshl2_add_u32 {t2}, {t1}, {t2}
          s_lshl_b32 {t1}, {t1}, 5
          s_lshl2_add_u32 {t1}, {t0}, {t1}
          s_and_b32 {t0}, {sJ}, 1
          s_lshl_b32 {t3}, {t0}, 6
          s_xor_b32 {t0}, {t0}, 1
          s_lshl_b32 {t0}, {t0}, 9
          s_movk_i32 {t4}, 9216
          s_mul_i32 {sW1}, {sJ}, 576
          v_bfe_u32 {a_}, v0, 3, 2
          v_lshrrev_b32 {b_}, 5, v0
          v_lshl_add_u32 {a_}, {b_}, 3, {a_}
          v_add_u32 {a_}, {t2}, {a_}
          v_lshlrev_b32 {b_}, 1, {tG}
          v_xor_b32 {b_}, {b_}, {e_}
          v_lshl_add_u32 {b_}, {b_}, 4, {t3}
          v_mad_u32_u24 v12, {a_}, {t4}, {b_}
          v_lshl_add_u32 {a_}, {tG}, 3, {tR}
          v_add_u32 {a_}, {t1}, {a_}
          v_and_b32 {b_}, 1, {tG}
          v_lshlrev_b32 {b_}, 1, {b_}
          v_xor_b32 {b_}, {b_}, {tC}
          v_lshl_add_u32 {b_}, {b_}, 4, {t0}
          v_mad_u32_u24 v13, {a_}, {t4}, {b_}""")
    SU.append(f"""s_lshl_b32 {t0}, {sW}, 7
          s_lshl_b32 s94, {sW}, 9
          s_mul_i32 s95, {sJ}, 1296""")
    for dd in range(2):
        o = f"v{53 + dd}"
        SU.append(f"v_add_u32 {a_}, {t0}, v0" if dd == 0 else f"v_add_u32 {a_}, 64, {a_}")
        SU.append(f"""v_mul_u32_u24 {b_}, 6554, {a_}
              v_lshrrev_b32 {b_}, 16, {b_}
              v_mad_i32_i24 {c_}, {b_}, -10, {a_}
              v_mul_u32_u24 {o}, 36, {b_}
              v_lshl_add_u32 {o}, {c_}, 2, {o}
              v_cmp_gt_u32 vcc, 9, {c_}
              v_cndmask_b32 {o}, {OOB}, {o}, vcc
              v_cmp_gt_u32 vcc, 36, {b_}
              v_cndmask_b32 {o}, {OOB}, {o}, vcc""")
    SU.append(f"""s_and_b32 {t0}, {sW}, 1
          s_lshl_b32 {t1}, {t0}, 3
          s_lshl_b32 {t0}, {t0}, 4
          s_lshr_b32 {t2}, {sW}, 1
          s_lshl2_add_u32 {t0}, {t2}, {t0}
          s_lshl_b32 {t2}, {sM}, 5
          s_add_u32 {t0}, {t0}, {t2}
          s_mul_i32 {t0}, {t0}, 3456
          s_mul_i32 {t2}, {sJ}, 72
          s_add_u32 {sFS}, {t0}, {t2}
          s_lshl_b32 {sW2K}, {sW}, 11
          s_movk_i32 {t2}, 3456
          v_add_u32 {a_}, {t1}, {tG}
          v_xor_b32 {a_}, {a_}, {tI}
          v_and_b32 {b_}, 3, {a_}
          v_min_u32 {c_}, 2, {b_}
          v_mul_u32_u24 {c_}, 1152, {c_}
          v_add_u32 {c_}, 64, {c_}
          v_cmp_eq_u32 vcc, 2, {b_}
          v_subrev_u32 {d_}, 32, {c_}
          v_cndmask_b32 {c_}, {c_}, {d_}, vcc
          v_cmp_eq_u32 vcc, 3, {b_}
          v_add_u32 {d_}, 4, {c_}
          v_cndmask_b32 {c_}, {c_}, {d_}, vcc""")
    for dd in range(2):
        o = f"v{55 + dd}"
        SU.append(f"v_lshrrev_b32 {a_}, 2, {a_}" if dd == 0 else f"v_xor_b32 {a_}, 1, {a_}")
        SU.append(f"""v_mul_u32_u24 {d_}, 1152, {a_}
              v_lshl_add_u32 {d_}, {b_}, 4, {d_}
              v_lshrrev_b32 {e_}, 1, {b_}
              v_lshl_add_u32 {e_}, {e_}, 2, {d_}
              v_cmp_eq_u32 vcc, 2, {a_}
              v_cndmask_b32 {d_}, {d_}, {e_}, vcc
              v_cmp_eq_u32 vcc, 3, {a_}
              v_cndmask_b32 {d_}, {d_}, {c_}, vcc
              v_mad_u32_u24 {o}, {tG}, {t2}, {d_}""")
    SU.append(f"v_add_u32 v56, {8 * 3456 - 1024}, v56")
    VA, VB = ["v2", "v3", "v8", "v9"], ["v10", "v11"]
    SU.append(f"""v_and_b32 {b_}, 1, {tG}
          v_lshl_add_u32 {a_}, {b_}, 2, {tR}
          v_lshrrev_b32 {c_}, 1, {a_}
          v_lshlrev_b32 {c_}, 5, {c_}
          v_lshl_add_u32 {c_}, {a_}, 7, {c_}
          v_lshl_add_u32 {c_}, {tC}, 3, {c_}
          v_lshrrev_b32 {d_}, 1, {tG}
          v_mul_u32_u24 {d_}, 9216, {d_}
          v_add_u32 v2, {c_}, {d_}
          v_xor_b32 v3, 32, v2
          v_xor_b32 v8, 64, v2
          v_xor_b32 v9, 96, v2
          v_lshrrev_b32 {a_}, 2, v0
          v_lshlrev_b32 {c_}, 6, {a_}
          v_lshl_add_u32 {c_}, {b_}, 5, {c_}
          v_lshl_add_u32 {c_}, {tC}, 3, {c_}
          v_add_u32 v10, 8192, {c_}
          v_xor_b32 v11, 32, v10
          v_add_u32 v4, {HALF}, v1
          v_mul_u32_u24 {a_}, 288, {a_}
          s_add_u32 {t0}, {sLW}, {S3}
          v_add_u32 {a_}, {t0}, {a_}
          v_lshl_add_u32 v17, {tC}, 4, {a_}
          v_lshl_add_u32 v18, {tC}, 3, {a_}
          v_add_u32 v18, 256, v18""")
    STASH = 188
    SU.append(f"""s_mov_b32 {t0}, 0
          s_mov_b32 {t1}, 0
          s_mov_b32 {t2}, 0
          s_cmp_eq_u32 {sM}, 9
          s_cmov_b32 {t0}, 2
          s_cmp_eq_u32 {sM}, 10
          s_cmov_b32 {t0}, 20
          s_cmov_b32 {t1}, 68
          s_cmov_b32 {t2}, 16
          s_cmp_ge_u32 {sM}, 14
          s_cselect_b64 {m2_}, -1, 0
          s_movk_i32 {t3}, 1152
          s_mov_b32 s3, -18
          v_mov_b32 v57, {OOB}""")
    for d in range(9):
        q = "v0"
        if d: SU.append(f"v_add_u32 {a_}, {64 * d}, v0"); q = a_
        SU.append(f"""v_mul_u32_u24 {b_}, 3641, {q}
              v_lshrrev_b32 {b_}, 16, {b_}
              v_mad_i32_i24 {c_}, {b_}, s3, {q}
              v_lshrrev_b32 {e_}, 4, {b_}
              v_mad_u32_u24 {d_}, {e_}, {t0}, {b_}
              v_bfe_u32 {e_}, {b_}, 2, 2
              v_mad_u32_u24 {d_}, {e_}, {t1}, {d_}
              v_bfe_u32 {e_}, {b_}, 1, 1
              v_mad_u32_u24 {d_}, {e_}, {t2}, {d_}""")
        if d % 4: SU.append(f"v_subrev_u32 {c_}, {(d % 4) * 64}, {c_}")
        SU.append(f"""v_lshlrev_b32 {c_}, 4, {c_}
              v_mad_u32_u24 {d_}, {d_}, {t3}, {c_}
              v_cndmask_b32 {d_}, {d_}, v{55 + min(d, 2)}, {m2_}
              v_accvgpr_write_b32 a{STASH + d}, {d_}""")
    g_, r_, cg_ = (lambda l: l >> 4), (lambda l: (l >> 2) & 3), (lambda l: l & 3)
    SU.append(f"""v_xor_b32 {a_}, {tG}, {tI}
          v_lshlrev_b32 {a_}, 4, {a_}
          v_lshl_add_u32 {a_}, {tI}, 8, {a_}
          v_add_u32 {a_}, {FS}, {a_}
          v_xor_b32 v25, 64, {a_}
          v_xor_b32 v26, 192, {a_}
          s_cmp_eq_u32 {sW}, 3
          s_cselect_b32 {t0}, 128, 0
          s_cselect_b64 {m2_}, -1, 0
          v_xor_b32 v24, {t0}, {a_}
          s_lshl_b32 s3, {sW}, 4
          s_add_u32 s99, s3, {PH}
          s_add_u32 s3, s3, {IR0}
          v_mov_b32 {e_}, {ZR}
          v_mul_u32_u24 {b_}, 24, {tR}
          v_add_u32 {b_}, {ET}, {b_}
          v_add_u32 {c_}, 8, {b_}
          v_cmp_gt_u32 vcc, 32, v0
          v_cndmask_b32 {b_}, {b_}, {c_}, vcc
          v_lshl_add_u32 {a_}, {tG}, 3, {tR}
          v_mad_u32_u24 {a_}, {a_}, 40, s99""")
    for h in range(2):
        hd = lambda l: int(8 * g_(l) + 4 * h + r_(l) >= 18)
        if h: SU.append(f"v_add_u32 {a_}, 160, {a_}")
        SU.append(setmask(m0_, lanemask(lambda l: cg_(l) == hd(l))))
        SU.append(setmask(m1_, lanemask(lambda l: cg_(l) == hd(l) + 2)))
        SU.append(f"s_cmp_eq_u32 {sW}, 3")
        SU.append(setmask(m0_, lanemask(lambda l: cg_(l) == 2 * (g_(l) & 1) + h), "s_cmov_b32"))
        SU.append(f"s_cmov_b64 {m1_}, 0")
        SU.append(f"""v_cndmask_b32 {c_}, {a_}, {b_}, {m2_}
              v_cndmask_b32 v{19 + h}, {e_}, {c_}, {m0_}
              v_cndmask_b32 v{21 + h}, {e_}, {a_}, {m1_}""")
    SU.append(setmask(m0_, lanemask(lambda l: (g_(l), cg_(l)) in ((0, 1), (1, 3)))))
    SU.append(setmask(m1_, lanemask(lambda l: (g_(l), cg_(l)) in ((2, 0), (3, 1)) and r_(l) < 2)))
    SU.append(f"""s_andn2_b64 {m0_}, {m0_}, {m2_}
          s_andn2_b64 {m1_}, {m1_}, {m2_}
          v_mad_u32_u24 {a_}, {tR}, 40, s99
          v_add_u32 {a_}, {32 * 40}, {a_}
          v_mad_u32_u24 {b_}, {tR}, 40, s3
          v_cndmask_b32 v23, {e_}, {a_}, {m0_}
          v_cndmask_b32 v23, v23, {b_}, {m1_}""")
    SU.append(setmask(m0_, lanemask(lambda l: l in (19, 32, 45))))
    SU.append(setmask(m1_, lanemask(lambda l: l in (29, 38, 51))))
    spw = I(f"ds_write_b32 {c_}, {b_}")
    SU.append(f"""v_cndmask_b32 {b_}, 0, v253, {m0_}
          v_cndmask_b32 {b_}, {b_}, v252, {m1_}
          v_lshlrev_b32 {c_}, 2, v0
          v_add_u32 {c_}, {SPEC}, {c_}
          v_or_b32 {d_}, {sW}, v0
          v_cmp_eq_u32 vcc, 0, {d_}
          v_cndmask_b32 v27, v57, 0, vcc""")
    SU.append(spw)
    for q in range(4):
        SU.append(f"v_accvgpr_write_b32 a{122 + (q >> 1) * 4 + (q & 1)}, 0")
    SU.append(f"""s_lshl2_add_u32 {t0}, {sM}, {sW}
          s_mul_i32 {t1}, {t0}, 57
          s_lshr_b32 {t1}, {t1}, 9
          s_mul_i32 {t2}, {t1}, 9
          s_sub_u32 {t2}, {t0}, {t2}
          s_xor_b32 {t1}, {t1}, {sN}
          s_and_b32 {t3}, {t1}, 1
          s_add_u32 {t2}, {t2}, {t3}
          s_cmp_eq_u32 {t2}, 9
          s_cmov_b32 {t2}, 0
          s_lshl2_add_u32 {t1}, {sC}, {t1}
          s_mul_i32 {t1}, {t1}, 9
          s_add_u32 {t1}, {t1}, {t2}
          s_mul_i32 {t1}, {t1}, {32 * 1152}
          s_mul_i32 {t2}, {sJ}, {W2S}
          s_add_u32 {t3}, {t0}, {252 - 28}
          s_movk_i32 {sRPt}, 1024
          s_mul_i32 {t4}, {t0}, 9
          s_cmp_ge_u32 {t0}, 28
          s_cmov_b32 {t4}, {t3}
          s_cmovk_i32 {sRPt}, 8192
          s_cmp_ge_u32 {t0}, 36
          s_cmovk_i32 {sRPt}, 1024
          s_lshl_b32 {t0}, {t4}, 10
          s_add_u32 {t2}, {t2}, {t0}
          s_add_u32 {t2}, {t2}, {W2P}
          s_mov_b32 {sRPs}, {OOB}
          s_mov_b32 {sRPd}, {OOB}
          s_cmp_le_u32 {sM}, 8
          s_cmov_b32 {sRPs}, {t1}
          s_cmov_b32 {sRPd}, {t2}
          s_lshl2_add_u32 {t3}, {sC}, {sW}
          s_mul_i32 {t1}, {t3}, {36 * 1152}
          s_mul_i32 {sWO}, {sN}, {WOS}
          s_add_u32 {sWO}, {sWO}, {WOP}
          s_mul_i32 {t3}, {t3}, 9216
          s_add_u32 {t2}, {sWO}, {t3}
          s_cmp_eq_u32 {sM}, 9
          s_cmov_b32 {sRPs}, {t1}
          s_cmov_b32 {sRPd}, {t2}
          s_mul_i32 {t1}, {sC}, {288 * 1152}
          s_add_u32 {t1}, {t1}, {16 * 1152}
          s_mul_i32 {t2}, {sC}, 9216
          s_add_u32 {t2}, {t2}, {sWO}
          s_add_u32 {t2}, {t2}, {16 * 9216}
          s_lshr_b32 {t0}, {sC}, 1
          s_or_b32 {t0}, {t0}, {sW}
          s_xor_b32 {t3}, {sM}, 10
          s_or_b32 {t0}, {t0}, {t3}
          s_cmp_eq_u32 {t0}, 0
          s_cmov_b32 {sRPs}, {t1}
          s_cmov_b32 {sRPd}, {t2}
          s_mul_i32 {t0}, {sN}, 288
          s_add_u32 {sRPs}, {sRPs}, {t0}
          s_add_u32 {t0}, {sFS}, {64 * 3456}
          s_cmp_ge_u32 {sM}, 14
          s_cmov_b32 {sRPs}, {t0}""")
    SU.append(f"""s_lshl_b32 {t0}, {sM}, 1
          s_cmp_eq_u32 {sW}, 2
          s_cmov_b32 {t0}, {sM}
          s_mul_i32 {t1}, {sW}, 36
          s_min_u32 {t1}, {t1}, 90
          s_add_u32 {t0}, {t0}, {t1}
          s_lshl_b32 {t0}, {t0}, 10
          s_mul_i32 {t1}, {sJ}, {WQP}
          s_add_u32 {t1}, {t1}, {WQ}
          s_add_u32 {sFX}, {t0}, {t1}
          s_add_u32 {sST}, {t1}, {sLW}
          s_add_u32 {sFY}, {sFX}, 1024
          s_cmp_eq_u32 {sW}, 2
          s_cmov_b32 {sFY}, {OOB}""")
    SU = atomize(SU)
    n0 = opt.get("n0", 40)
    A(SU[:n0])
    A("""s_waitcnt lgkmcnt(0)
         s_mov_b32 s4, s40
         s_mov_b32 s5, s41""")
    wsoff = opt.get("wsoff", 0) * MB
    if wsoff: A(f"s_add_u32 s58, s58, {wsoff}\n s_addc_u32 s59, s59, 0")
    nonce0 = A("s_load_dword s67, s[58:59], 0")
    A(stamp("karg"))
    SRD = []
    for base, src, n in ((20, 50, 5308416), (8, 42, 1990656), (12, 44, 20736), (36, 58, 268435456 - wsoff), (32, 56, 256), (28, 54, 2359296)):
        SRD.append(f"s_mov_b32 s{base}, s{src}\n s_mov_b32 s{base + 1}, s{src + 1}\n s_mov_b32 s{base + 2}, {n}\n s_mov_b32 s{base + 3}, 0x20000")
    SRD.append(f"""s_mov_b32 s18, 663552
          s_mov_b32 s19, 0x20000
          s_cmp_le_u32 {sM}, 8
          s_cselect_b32 s16, s52, s46
          s_cselect_b32 s17, s53, s47
          s_cmov_b32 s18, 5308416
          s_cmp_ge_u32 {sM}, 14
          s_cmov_b32 s16, s42
          s_cmov_b32 s17, s43
          s_cmov_b32 s18, 1990656""")

    w1seq = {}

    def w1dma(S, d):
        pre = []
        if (d == 0 and S > 0) or d == 5: pre = [I(f"s_add_u32 {sW1}, {sW1}, {32 * 9216}")]
        if d == 0: i = I(f"buffer_load_dwordx4 v13, {W1}, {sW1} offen lds", m0=(sLW, (S % 3) * SLOT + 8192))
        else:
            u = (d - 1) & 3
            i = I(f"buffer_load_dwordx4 v12, {W1}, {sW1} offen{off(128 * u)} lds", m0=(sLW, (S % 3) * SLOT + (d - 1) * 1024 - 128 * u))
        w1seq.setdefault(S, []).append(i)
        return pre + [i]

    pace = opt.get("pace", 64)
    xd = [[], []]; ops = []
    for sg in range(4):
        for d in range(9):
            i = I(f"buffer_load_dwordx4 v{14 + (sg & 1)}, {X}, {sX} offen{off(128 * d)} lds", m0=(sLW, sg * SLOT + 896 * d))
            xd[sg >> 1].append(i)
            ops.append(([I(f"s_add_u32 {sX}, {sX}, 9216")] if sg and not d else []) + [i])
    ops = [(o, None, pace) for o in ops]

    def ln(tt, su, nm, tmp, nset, lag):
        raw = 104 + 72 * tt
        L = [need(xd[tt])]
        if tt: L.append("v_add_u32 v29, 73728, v29\n v_add_u32 v30, 73728, v30")
        L += [f"ds_read_b128 {vr(raw + 4 * s)}, v{29 + (s & 1)}{off((s >> 1) * 1024)}" for s in range(18)]
        st = [I(mf(vr(su), vr(248), vr(raw + 4 * s), vr(su) if s else 0)) for s in range(18)]
        L += st
        L += [f"v_mul_f32 v{nm + r}, 0xbae38e39, v{su + r}" for r in range(4)]
        for s in range(18 + lag):
            if s < 18:
                D = tmp + 8 * (s % nset)
                L += [mf(vr(D), SEL[0], vr(raw + 4 * s), vr(nm)), mf(vr(D + 4), SEL[1], vr(raw + 4 * s), vr(nm))]
            if s >= lag:
                z = s - lag; D = tmp + 8 * (z % nset); dst = D if tt == 0 else 32 + 4 * z
                L += [f"v_cvt_pk_bf16_f32 v{dst + q}, v{D + 2 * q}, v{D + 2 * q + 1}" for q in range(4)]
                if tt == 0: L += [f"v_accvgpr_write_b32 a{4 * z + q}, v{D + q}" for q in range(4)]
        return L, st
    L0, st0 = ln(0, 32, 32, 64, 3, 2)
    L1, st1_ = ln(1, 96, 104, 112, 3, 2)
    gate = lambda st, d: st[17] if d == 0 else st[2 * d - 1]
    ops += [(w1dma(0, d), gate(st0, d), pace * (2 if d == 0 else 1)) for d in range(9)]
    small = [I(f"buffer_load_dwordx4 v{55 + dd}, {WQKV}, {sFS} offen{off(1024 * dd)} lds", m0=(sW2K, FS)) for dd in range(2)]
    small += [I(f"buffer_load_dword v{53 + dd}, {WPHI}, s95 offen lds", m0=("s94", PH + 256 * dd)) for dd in range(2)]
    ops += [(i, None, pace * 2 if k < 2 else pace // 2) for k, i in enumerate(small)]
    ops += [(w1dma(1, d), None, pace * (2 if d == 0 else 1)) for d in range(9)]
    ops += [(w1dma(2, d), gate(st1_, d), pace * (2 if d == 0 else 1)) for d in range(9)]
    if opt.get("pf"):
        PF = [f"s_and_b32 {t0}, {sM}, 7", f"s_lshl2_add_u32 {t0}, {t0}, {sN}", f"s_lshl2_add_u32 {t0}, {t0}, {sW}", f"s_mul_i32 {t0}, {t0}, 3",
              f"s_add_u32 {t0}, {t0}, 192", f"s_mul_i32 {t0}, {t0}, 9216", f"s_mul_i32 {t1}, {sC}, 2304", f"s_add_u32 s83, {t0}, {t1}",
              f"v_mul_u32_u24 {a_}, 3641, v0", f"v_lshrrev_b32 {a_}, 16, {a_}", f"v_mul_u32_u24 {b_}, {9216 - 18 * 128}, {a_}", f"v_lshl_add_u32 v58, v0, 7, {b_}",
              f"v_cmp_gt_u32 vcc, 54, v0", f"v_cndmask_b32 v58, {OOB}, v58, vcc"]
        SU += atomize(PF)
        ops.insert(opt["pf"], (I(f"buffer_load_dword a254, v58, {W1}, s83 offen"), SU[-1][-1], 2 * pace))
    W = Weaver(P, ops)
    W.run(SRD)
    W.run(SU[n0:])
    A(f"s_waitcnt lgkmcnt(0)\n s_or_b32 s84, s2, {sW}\n s_cmp_lg_u32 s84, 0\n s_cbranch_scc1 L_noepoch")
    P.begin()
    A(f"""s_mul_i32 s67, s67, 0x41c64e6d
          s_add_u32 s67, s67, 0x3039
          s_cmp_eq_u32 s67, 0
          s_cmov_b32 s67, 0x3039
          v_mov_b32 v31, s67
          buffer_store_dword v31, v27, {WS}, 0 offen sc1
          buffer_store_dword v31, v27, {DBG}, 0 offen sc1""")
    P.end()
    A("L_noepoch:")
    A(stamp("setup"))
    W.until(opt.get("xpre", 27))
    W.run(L0)
    A(stamp("ln0"))
    W.until(36)
    W.run(L1)
    W.until(opt.get("pre", 58))
    left = W.ops
    A(stamp("ln1"))

    dma_of = dict(w1seq)
    stseq = Seq(tDMA)

    def stream_dma(S, d):
        pre = []
        if S == 13 and d == 0:
            pre = [I(f"s_mul_i32 {sST}, {sJ}, {W2S}"), I(f"s_add_u32 {sST}, {sST}, {W2P}"), I(f"s_add_u32 {sST}, {sST}, {sLW}")]
            stseq.cur = None
        if S == 12:
            if d == 0:
                pre = [I(f"s_lshl_b32 s99, {sW}, 12"), I(f"s_sub_u32 {sST}, {sST}, s99"), I(f"s_mul_i32 s99, {sW}, 5120")]
                stseq.cur = None
            p2, so, lo = stseq.at(sST, 3 * SLOT + d * 1024)
            i = I(f"buffer_load_dwordx4 v1, {WS}, {so} offen{off(lo)} sc1 lds", m0=("s99", (S % 3) * SLOT + d * 1024 - lo))
        else:
            c = (S - 9 if S < 13 else S - 13) * SLOT + d * 1024
            p2, so, lo = stseq.at(sST, c)
            i = I(f"buffer_load_dwordx4 v1, {WS}, {so} offen{off(lo)} sc1 lds", m0=(sLW, (S % 3) * SLOT + d * 1024 - lo))
        dma_of.setdefault(S, []).append(i)
        return pre + p2 + [i]

    def dma_items(S):
        if S <= 8:
            r = [w1dma(S, d) for d in range(9)]; dma_of[S] = w1seq[S]; return r
        return [stream_dma(S, d) for d in range(5 if S == 12 else 9)]

    def ldsoff(o, lo, hi): return (lo, o) if o < HALF else (hi, o - HALF)

    def gemm(frags, la, nb, ring, first_barrier=True):
        S = Stream(); reads = []; bar = {}; barneed = {}
        for n, (st, first, rd, mm) in enumerate(frags):
            for t in mm(ar(ring + 4 * (n % nb))): S.mfma(t)
        for n, (st, first, rd, mm) in enumerate(frags):
            pos = 2 * (n - la)
            if first:
                bar[st] = max(pos, -1)
                if n or first_barrier:
                    barneed[st] = need()
                    S.after(bar[st], barneed[st], "s_barrier", stamp(f"B{st}"))
            rs = rd(ring + 4 * (n % nb))
            if isinstance(rs, tuple):
                if rs[0]: S.after(pos - 1 if pos >= 1 else -1, rs[0])
                rs = rs[1]
            rs = [I(t) for t in rs]
            reads.append(rs)
            for k, r in enumerate(rs): S.after(pos + k if pos >= 0 else -1, r)
        for n in range(0, len(frags) - 1, 2):
            S.mf[2 * n].deps += reads[n + 1]; S.virt[2 * n - 1] = 1
        return S, bar, barneed

    def b128(slot, f):
        base, o = ldsoff(slot * SLOT + f * 1024, "v1", "v4")
        return lambda r: [f"ds_read_b128 {ar(r)}, {base}{off(o)}"]

    XC = lambda tt, s: ar(4 * s) if tt == 0 else vr(32 + 4 * s)
    fr = []
    for St in range(9):
        used = set()
        for f in range(36):
            ks, T = divmod(f, 18); s = 2 * St + ks
            sl = (St % 3) * SLOT if St % 3 < 2 else 0
            if T < 16: base, o, hs = VA[T & 3], sl + 1024 * (4 * ks + (T >> 2)), 18432
            else: base, o, hs = VB[T & 1], sl + 18432 * ks, 9216
            tog = []
            if base not in used:
                used.add(base)
                if St % 3 == 2: tog = [f"v_add_u32 {base}, {2 * SLOT}, {base}"]
                elif St % 3 == 0 and St: tog = [f"v_subrev_u32 {base}, {2 * SLOT}, {base}"]
            rd = lambda r, base=base, o=o, hs=hs, tog=tog: (tog, [f"ds_read_b64_tr_b16 {ar(r, 2)}, {base}{off(o)}", f"ds_read_b64_tr_b16 {ar(r + 2, 2)}, {base}{off(o + hs)}"])
            acc = 104 + 16 * (T >> 1) + 8 * (T & 1)
            mm = lambda a, acc=acc, s=s: [mf(vr(acc + 4 * tt), a, XC(tt, s), vr(acc + 4 * tt) if s else 0) for tt in range(2)]
            fr.append((St, f == 0, rd, mm))
    TACC = [248, 8, 112, 128, 144, 160, 176]
    for f in range(126):
        if f < 72: tile, s = 2 * (f // 36) + (f & 1), (f % 36) >> 1
        elif f < 90: tile, s = 4, f - 72
        else: tile, s = 5 + (f & 1), (f - 90) >> 1
        St = 9 + f // 36
        acc = TACC[tile]
        mm = lambda a, acc=acc, s=s: [mf(vr(acc + 4 * tt), a, XC(tt, s), vr(acc + 4 * tt) if s else 0) for tt in range(2)]
        fr.append((St, f % 36 == 0, b128(St % 3, f % 36), mm))
    SA, bar, bn = gemm(fr, opt.get("laA", 6), 8, 72)
    dstart, vc = opt.get("dstart", 2), opt.get("vc", 4)

    def ring(S, St, tgt):
        p = bar[St] + dstart
        for d, it in enumerate(dma_items(tgt)):
            p = S.vm(it, p, 2 * vc if tgt <= 8 and d == 0 else vc) + 1
    p = 1
    for it, g, c in left: p = SA.vm(it, p, vc * c // pace) + 1
    for St in range(1, 13): ring(SA, St, St + 2)
    for St in range(13): bn[St].deps += dma_of[St]
    bn[0].deps += small + [spw]

    FB, FAa = 104, 128
    foldB = []
    for ty, regs in enumerate((("v19", "v20"), ("v21", "v22"), ("v23",))):
        for x in range(2):
            for h, va in enumerate(regs):
                foldB.append(I(f"ds_read_b64_tr_b16 {ar(FB + 8 * ty + 4 * x + 2 * h, 2)}, {va}{off(8 * x)}"))

    def fold_unit(pitch, dx, dy):
        rd = [I(f"ds_read_b128 {ar(FAa + 8 * ty + 4 * be)}, v{24 + ty}{off(pitch * be)}") for ty in range(3) for be in range(2)]
        mm = [[I(mf(vr(248 + 4 * be), ar(FAa + 8 * ty + 4 * be), ar(FB + 8 * ty + 4 * x), vr(248 + 4 * be) if ty else 0))
               for ty in range(3) for be in range(2)] for x in range(2)]
        cv = [[I(f"v_cvt_pk_bf16_f32 v{(248, 28)[x] + q}, v{248 + 2 * q}, v{249 + 2 * q}") for q in range(4)] for x in range(2)]
        st = [I(f"buffer_store_dwordx4 {vr((248, 28)[x])}, v1, {WS}, {(dx, dy)[x]} offen sc1") for x in range(2)]
        return rd, mm, cv, st
    rd, mm, cv, st1 = fold_unit(4096, sFX, sFY)
    SA.fill(foldB + rd, 0, 20)
    SA.spread(mm[1], 22, 28); SA.fill(cv[1], 31, 37)
    SA.spread(mm[0], 37, 43); SA.fill(cv[0], 46, 52)
    q = 52
    rpd = []
    for d in range(9):
        i = I(f"buffer_load_dwordx4 v{14 + (d & 1)}, {RP}, {sRPs} offen{off((d % 4) * 1024)} lds", m0=(sLW, S3 + (d // 4) * 4096)); rpd.append(i)
        p = SA.vm([I(f"v_accvgpr_read_b32 v{14 + (d & 1)}, a{STASH + d}"), i], max(p, 2), opt.get("rpc", 6)) + 1
    prp = p
    SA.vm(st1[1], 38, 1, force=True); SA.vm(st1[0], q, 1, force=True)

    q += 2
    sqm = [mf(vr(248 + 4 * tt), XC(tt, s), XC(tt, s), vr(248 + 4 * tt) if s else 0) for s in range(18) for tt in range(2)]
    SA.spread(sqm, q, q + 18)
    L = ["v_mov_b32 v16, 1.0"]
    for tt in range(2):
        L.append(f"v_cndmask_b32 v{28 + tt}, 0, v{248 + 4 * tt}, {MK[0]}")
        L += [f"v_cndmask_b32 v{28 + tt}, v{28 + tt}, v{248 + 4 * tt + r}, {MK[r]}" for r in range(1, 4)]
    q = SA.fill(L, q + 21, q + 33)[-1] + 1
    SA.after(q, f"v_mfma_f32_16x16x4_f32 {vr(248)}, v16, v28, 0"); SA.after(q + 1, f"v_mfma_f32_16x16x4_f32 {vr(252)}, v16, v29, 0")
    L = ["v_mov_b32 v16, 0x3727c5ac", "v_and_b32 v30, 15, v0", f"s_lshl_b32 {tA}, {sW}, 7", f"s_add_u32 {tA}, {tA}, {RSH}", f"v_lshl_add_u32 v30, v30, 2, {tA}"]
    for tt in range(2):
        L += [f"v_fmamk_f32 v{5 + tt}, v{248 + 4 * tt}, 0x3ae38e39, v16", f"v_rsq_f32 v{5 + tt}, v{5 + tt}"]
    L += ["ds_write_b32 v30, v5", "ds_write_b32 v30, v6 offset:64"]
    q = SA.fill(L, q + 5, q + 20)[-1] + 1
    rd, mm, cv, st2 = fold_unit(18432, tA, tB)
    bn[2].deps += rpd[:2]
    assert q <= bar[2] + 2, q
    SA.after(bar[2] + 2, f"s_cmp_lt_u32 {sM}, 14", "s_cbranch_scc1 L_nof2", "@begin",
             "v_bfe_u32 v16, v0, 3, 1", "v_mul_u32_u24 v16, 7168, v16", f"v_subrev_u32 v16, {FS - S3}, v16",
             [f"v_add_u32 v{24 + ty}, v16, v{24 + ty}" for ty in range(3)],
             f"s_cmp_eq_u32 {sW}, 2", f"s_movk_i32 {tA}, 4096", f"s_cmovk_i32 {tA}, 2048", f"s_add_u32 {tA}, {tA}, {sFX}", f"s_add_u32 {tB}, {sFY}, 4096",
             rd, mm[1], cv[1], st2[1], mm[0], cv[0], st2[0], "@end", "L_nof2:")
    RPA = 152
    rpr, rps = [], []
    sq = Seq(tC_)
    for T in range(9):
        va, o = ("v17", 64 * (T >> 1) + 8 * (T & 1)) if T < 8 else ("v18", 0)
        rpr += [I(f"ds_read_b64_tr_b16 {ar(RPA + 4 * T + 2 * h, 2)}, {va}{off(o + 4608 * h)}") for h in range(2)]
        pre = [I(f"s_add_u32 {sRPd}, {sRPd}, {sRPt}")] if T else []
        rps.append(pre + [I(f"buffer_store_dwordx4 {ar(RPA + 4 * T)}, v1, {WS}, {sRPd} offen sc1")])
    p0 = prp + opt.get("rp0", 30)
    if opt.get("verbose", 1): print("left", len(left), "repack loads end", prp, "rstd", q)
    SA.after(p0 - 1, need(rpd))
    pos = SA.fill(rpr, p0, p0 + 30)
    q = SA.chain(rps, lambda T: pos[2 * T + 1] + 4, vc)
    if opt.get("verbose", 1): print("repack stores", q)
    f1s, f1c = opt.get("f1s", 4), opt.get("f1c", 6)
    nl = f"buffer_load_dword v7, off, {DBG}, 0 sc1"
    SA.vm(nl, bar[f1s - 2] + 40, 2)
    SA.after(bar[f1s] - 2, check(nl, "v_cmp_eq_u32 vcc, 0, v7", 0))
    bn[f1s].deps += st1 + st2 + [x[-1] for x in rps]

    def signal(pre, lane="v27"): return pre + [f"buffer_store_dword v7, {lane}, {WS}, {sF} offen sc1"]
    SA.after(bar[f1s] + 1, signal([f"s_lshl_b32 {sF}, {sJ}, 5", f"s_add_u32 {sF}, {sF}, {sM}", f"s_lshl_b32 {sF}, {sF}, 2", f"s_add_u32 {sF}, {sF}, {F1}"]))
    f1a = [f"v_and_b32 v28, 15, v0", f"v_lshlrev_b32 v28, 2, v28", f"s_lshl_b32 {tA}, {sJ}, 7", f"v_add_u32 v28, {tA}, v28",
           f"v_and_b32 v29, 3, v0", f"v_lshlrev_b32 v29, 9, v29", f"s_lshl_b32 {tA}, {sN}, 7", f"v_add_u32 v29, {tA}, v29",
           f"v_bfe_u32 v30, v0, 2, 1", f"v_lshl_add_u32 v29, v30, 2, v29", f"v_add_u32 v29, 36, v29",
           setmask("s[40:41]", lanemask(lambda l: 16 <= l < 22)), f"v_cndmask_b32 v28, v28, v29, s[40:41]", f"s_movk_i32 {sFP}, {F1}"]
    f1a += [f"s_lshl2_add_u32 {tA}, {sM}, {sW}", f"s_lshl2_add_u32 {tA}, {tA}, {sC}", f"s_lshl_b32 {tA}, {tA}, 2"]
    for dl in range(4):
        f1a += [f"s_xor_b32 {tB}, {sN}, {dl}", f"s_add_u32 {tB}, {tB}, {tA}", f"s_mul_i32 {tB}, {tB}, 18432", f"s_add_u32 {sHO if dl == 0 else sHR[dl]}, {tB}, {HB}"]
    SA.fill(atomize(f1a), bar[3] + 2, bar[4] - 4)
    fl = f"buffer_load_dword v31, v28, {WS}, {sFP} offen sc1"
    SA.vm(fl, bar[f1c] - opt.get("f1lead", 30), 2, force=True)
    SA.after(bar[f1c] - 2, check(fl, CMPF, 1))
    hst = []; its = []; last = []
    sq = Seq(tA)
    for k in range(9):
        g0 = 104 + 16 * k
        for tt in range(2):
            src = [g0 + 4 * tt, g0 + 4 * tt + 2, g0 + 8 + 4 * tt, g0 + 10 + 4 * tt]
            its += [f"v_cvt_pk_bf16_f32 v{g0 + 4 * tt + q}, v{src[q]}, v{src[q] + 1}" for q in range(4)]
            its += [f"v_pk_max_i16 v{g0 + 4 * tt + q}, v{g0 + 4 * tt + q}, 0" for q in range(4)]
            last.append(len(its) - 1)
            pre, so, lo = sq.at(sHO, (2 * k + tt) * 1024)
            hst.append(pre + [I(f"buffer_store_dwordx4 {vr(g0 + 4 * tt)}, v1, {WS}, {so} offen{off(lo)} sc1")])
    pos = SA.fill(its, opt.get("he0", 624), opt.get("he1", 800))
    for k in range(9): assert pos[16 * k] >= 619 + 4 * k and pos[16 * k + 15] < [718, 720, 790, 826, 826, 830, 830, 830, 900][k], (k, pos)
    hs0, hsd = opt.get("hs0", 640), opt.get("hsd", 14)
    if opt.get("nohst"): hst = hst[:1]
    q = SA.chain(hst, lambda z: max(pos[last[z]] + 1, hs0 + hsd * z), vc)
    if opt.get("verbose", 1): print("h stores", q)
    hst = [x[-1] for x in hst]
    SA.after(bar[f1c] - 1, f"s_lshl_b32 {tD}, {sW}, 11", f"s_add_u32 {tD}, {tD}, {sWO}")
    wol = []
    for k in range(18):
        for x in range(2):
            pre = [I(f"s_add_u32 {tC_}, {tD}, {k * 9216}")] if x == 0 else []
            wol.append(pre + [I(f"buffer_load_dwordx4 {ar(104 + 72 * x + 4 * k)}, v1, {WS}, {tC_} offen{off(x * 1024)} sc1")])
    if opt.get("nowol"): wol = wol[:2]
    pw_ = SA.chain(wol, bar[f1c] + 2, vc)
    if opt.get("verbose", 1): print("wo loads", pw_, "spill", len(SA.spill))
    HWs, HFs = tA, tB
    adr = [f"v_and_b32 v28, 15, v0", f"v_lshrrev_b32 v29, 4, v0", f"s_lshl_b32 {tA}, {sW}, 5", f"v_add_u32 v28, {tA}, v28",
           f"v_mul_u32_u24 v17, 296, v28", f"v_mul_u32_u24 v30, 72, v29", f"v_add3_u32 v17, v17, v30, {sFP}",
           f"v_mul_u32_u24 v18, 104, v28", f"v_lshl_add_u32 v18, v29, 3, v18", f"v_add_u32 v18, {VIMG}, v18"]
    adr.insert(0, f"s_mov_b32 {sFP}, {S3}")
    adr += [f"v_lshrrev_b32 v28, 2, v0", f"v_and_b32 v29, 3, v0",
            f"s_lshr_b32 {tA}, {sW}, 1", f"s_and_b32 {tB}, {sW}, 1",
            f"v_mul_u32_u24 v20, 296, v28", f"s_mul_i32 s40, {tA}, 72", f"s_lshl_b32 s41, {tB}, 3", f"s_add_u32 s40, s40, s41",
            f"s_add_u32 s40, s40, {S3 + 144}", f"v_lshl_add_u32 v19, v29, 4, v20", f"v_add_u32 v19, s40, v19",
            f"v_and_b32 v30, 1, v29", f"v_mul_u32_u24 v30, 72, v30", f"v_add_u32 v20, v20, v30", f"v_add_u32 v20, {S3 + 208}, v20",
            f"v_mul_u32_u24 v21, 104, v28", f"v_lshl_add_u32 v21, v29, 3, v21", f"s_lshl_b32 s40, {tA}, 5", f"s_add_u32 s40, s40, {VIMG}",
            [f"s_mov_b32 s41, {VIMG + 64}", f"s_cmp_eq_u32 {tB}, 0", f"s_cselect_b32 s42, s40, s41", f"s_cselect_b32 s43, s41, s40"],
            f"v_add_u32 v22, s43, v21", f"v_add_u32 v21, s42, v21"]
    def xsel(h, i): return 0 if i == h else 1 if i == 4 * h + 2 else 2 if i == 4 * h + 3 else None
    adr += [f"s_lshl2_add_u32 s40, {sJ}, {sW}", f"s_lshr_b32 s41, {sM}, 1", f"s_lshl3_add_u32 s40, s40, s41", f"s_and_b32 s42, {sM}, 1", f"s_lshl_b32 s42, s42, 3",
            f"s_lshl_b32 s41, s40, 9", f"s_add_u32 s41, s41, {KVC}", f"s_add_u32 s41, s41, s42",
            f"s_lshl_b32 s40, s40, 10", f"s_add_u32 s40, s40, {KV1}", f"s_add_u32 s40, s40, s42",
            f"v_add_u32 v23, s40, v1",
            f"v_and_b32 v28, 3, v0", f"v_subrev_u32 v28, 1, v28", f"v_max_i32 v28, 0, v28", f"v_lshrrev_b32 v29, 4, v0",
            f"v_mad_u32_u24 v28, v29, 3, v28", f"v_lshl_add_u32 v28, v28, 4, s41", f"v_mov_b32 v30, {OOB}",
            [f"s_cmp_lt_u32 {sW}, 2"] + setmask("s[42:43]", lanemask(lambda l: xsel(1, l & 15) is not None))
            + setmask("s[42:43]", lanemask(lambda l: xsel(0, l & 15) is not None), "s_cmov_b32"),
            f"v_cndmask_b32 v24, v30, v28, s[42:43]",
            f"v_add_u32 v28, 192, v28", f"v_and_b32 v29, 15, v0", f"v_lshl_add_u32 v29, v29, 4, s41", f"v_add_u32 v29, 192, v29",
            [f"s_mov_b64 s[42:43], 0", f"s_cmp_eq_u32 {sW}, 1"]
            + setmask("s[42:43]", lanemask(lambda l: l < 32 and xsel(l >> 4, l & 15) is not None), "s_cmov_b32"),
            f"v_cndmask_b32 v25, v30, v28, s[42:43]",
            [f"s_mov_b64 s[42:43], 0", f"s_cmp_eq_u32 {sW}, 0", "s_cmov_b32 s42, 0xffff", f"s_cmp_eq_u32 {sW}, 2", "s_cmov_b32 s42, 0xffff0000"],
            f"v_cndmask_b32 v25, v25, v29, s[42:43]",
            [f"s_bitcmp1_b32 {sW}, 0", "s_cselect_b64 s[42:43], -1, 0"],
            f"v_cndmask_b32 v28, v23, v24, s[42:43]", f"v_cndmask_b32 v24, v24, v23, s[42:43]", f"v_mov_b32 v23, v28",
            f"v_cmp_eq_u32 vcc, 0, v0", f"v_cndmask_b32 v27, v30, 0, vcc",
            "v_accvgpr_read_b32 v28, a250", "v_accvgpr_read_b32 v29, a251", "v_accvgpr_write_b32 a252, v28", "v_accvgpr_write_b32 a253, v29",
            f"v_and_b32 v26, 3, v0", f"v_lshlrev_b32 v26, 2, v26",
            f"s_lshl2_add_u32 {sFP}, {sM}, {sC}", f"s_lshl_b32 {sFP}, {sFP}, 3", f"s_add_u32 {sFP}, {sFP}, {sW}", f"s_lshl_b32 {sFP}, {sFP}, 4",
            f"s_add_u32 {sFP}, {sFP}, {F2}", f"s_lshl2_add_u32 {sF}, {sN}, {sFP}"]
    SA.fill(atomize(adr), bar[f1c] + 3, bar[8] + 40)

    pw = []

    def softmax(tt, EP):
        y = [TACC[f >> 2] + 4 * tt + (f & 3) for f in range(18)]
        L = [f"v_mul_f32 v28, {LOG2E:#x}, v{5 + tt}"]
        for op, d in (("max", 29), ("min", 30)):
            L.append(f"v_{op}3_f32 v{d}, v{y[0]}, v{y[1]}, v{y[2]}")
            for f in range(3, 17, 2): L.append(f"v_{op}3_f32 v{d}, v{d}, v{y[f]}, v{y[f + 1]}")
            L.append(f"v_{op}_f32 v{d}, v{d}, v{y[17]}")
        L += ["v_mul_f32 v29, v29, v28", "v_mul_f32 v30, v30, v28"]
        for f in range(18):
            L += [f"v_fma_f32 v{EP[f]}, v{y[f]}, v28, -v29", f"v_fma_f32 v{y[f]}, -v{y[f]}, v28, v30"]
        for f in range(18):
            L += [f"v_exp_f32 v{EP[f]}, v{EP[f]}", f"v_exp_f32 v{y[f]}, v{y[f]}"]
        L += [f"v_add_f32 v29, v{EP[0]}, v{EP[1]}", f"v_add_f32 v30, v{y[0]}, v{y[1]}"]
        for f in range(2, 18): L += [f"v_add_f32 v29, v29, v{EP[f]}", f"v_add_f32 v30, v30, v{y[f]}"]
        L += ["v_rcp_f32 v29, v29", "v_rcp_f32 v30, v30"]
        for f in range(18): L += [f"v_mul_f32 v{EP[f]}, v29, v{EP[f]}", f"v_mul_f32 v{y[f]}, v30, v{y[f]}"]
        for q in range(18):
            src = [EP[2 * q], EP[2 * q + 1]] if q < 9 else [y[2 * q - 18], y[2 * q - 17]]
            L.append(f"v_cvt_pk_bf16_f32 v{EP[q]}, v{src[0]}, v{src[1]}")
            if q & 1:
                w_ = I(f"ds_write_b64 v17, {vr(EP[q - 1], 2)}{off(4 * (q - 1) + 4736 * tt)}"); pw.append(w_); L.append(w_)
        return L
    EP0 = list(range(192, 200)) + list(range(208, 216)) + [224, 225]
    SA.fill(softmax(0, EP0), 831, 900)
    SA.emit(P)
    A(stamp("A_end"))
    W = Weaver(P, [(x, None, pace) for x in SA.spill])
    W.run(softmax(1, list(range(32, 50))))
    L = []
    for tt in range(2):
        for x, src in enumerate((160, 176)):
            b = src + 4 * tt
            L += [f"v_mul_f32 v{b + r}, v{5 + tt}, v{b + r}" for r in range(4)]
            L += [f"v_cvt_pk_bf16_f32 v{b}, v{b}, v{b + 1}", f"v_cvt_pk_bf16_f32 v{b + 1}, v{b + 2}, v{b + 3}"]
            pw.append(I(f"ds_write_b64 v18, {vr(b, 2)}{off(32 * x + 1664 * tt)}")); L.append(pw[-1])
        b = 146 + 4 * tt
        L += [f"v_mul_f32 v{b}, v{5 + tt}, v{b}", f"v_mul_f32 v{b + 1}, v{5 + tt}, v{b + 1}", f"v_cvt_pk_bf16_f32 v{b + 1}, v{b}, v{b + 1}", f"v_mov_b32 v{b}, 0x3f803f80"]
        pw.append(I(f"ds_write_b64 v18, {vr(b, 2)}{off(64 + 1664 * tt)}")); L.append(pw[-1])
    W.run(L)
    W.until(10 ** 6)
    A(need(hst)); A(signal([]))
    A(need(pw, dma_of[13]))
    A("s_barrier")
    A(stamp("X"))
    fl2 = f"buffer_load_dword v31, v26, {WS}, {sFP} offen sc1"
    d15 = dma_items(15)
    L = []
    for k in range(4):
        for u, va in enumerate(("v19", "v21", "v22", "v20")):
            pitch = 296 if va in ("v19", "v20") else 104
            L += [f"ds_read_b64_tr_b16 {vr(32 + 16 * k + 4 * u + 2 * h, 2)}, {va}{off((32 * k + 16 * h) * pitch)}" for h in range(2)]
    for k in range(4):
        b = 32 + 16 * k
        L += [mf(vr(8), vr(b), vr(b + 4), vr(8) if k else 0), mf(vr(12), vr(b), vr(b + 8), vr(12) if k else 0), mf(vr(248), vr(b + 12), vr(b + 4), vr(248) if k else 0)]
    kvs = []
    for d, va in ((8, "v23"), (12, "v24"), (248, "v25")):
        kvs.append(I(f"buffer_store_dwordx2 {vr(d, 2)}, {va}, {WS}, 0 offen sc1"))
        L += [f"v_cvt_pk_bf16_f32 v{d}, v{d}, v{d + 1}", f"v_cvt_pk_bf16_f32 v{d + 1}, v{d + 2}, v{d + 3}", kvs[-1]]
    W = Weaver(P, [(x, None, pace) for x in d15[:opt.get("d15", 5)]])
    W.run(L)
    d15 = [o[0] for o in W.ops] + d15[opt.get("d15", 5):]
    A(stamp("kv"))

    HBk = lambda k, tt: vr(104 + 16 * k + 4 * tt) if k < 9 else ar(8 * ((k - 9) % 9) + 4 * tt) if k < 27 else vr(176 + 8 * (k - 27) + 4 * tt)
    fr = []; done = {}
    for u in range(9):
        for f in range(36):
            k, T = 4 * u + f // 9, f % 9
            if u >= 7: T, k = divmod(36 * (u - 7) + f, 8); k += 28
            acc = 32 + 8 * T
            mm = lambda a, acc=acc, k=k: [mf(vr(acc + 4 * tt), a, HBk(k, tt), vr(acc + 4 * tt) if k else 0) for tt in range(2)]
            fr.append((13 + u, f == 0, b128((13 + u) % 3, f), mm))
            done[T] = 2 * len(fr) - 1
    SB, bar, bn = gemm(fr, opt.get("laB", 6), 8, 72, first_barrier=False)
    ob = opt.get("ob", 17)
    f2c = opt.get("f2c", 24)
    f3s, f3l, f3c = opt.get("f3s", 44), opt.get("f3l", 96), opt.get("f3c", 120)
    f4c = bar[20] + opt.get("f4c", -4)
    lat = opt.get("lat", 44)
    SB.vm(fl2, 1, 2)
    SB.after(f2c, check(fl2, CMPF, 2))
    ch = [[(it, 2, bar[15] - lat, vc) for it in d15]]
    for St in range(14, 20): ch[0] += [(it, bar[St] + dstart, bar[St + 2] - lat - vc * (8 - d), vc) for d, it in enumerate(dma_items(St + 2))]
    for St in range(14, 22): bn[St].deps += dma_of[St]
    sq = Seq(tA); hl = []
    for k in range(9, 36):
        for tt in range(2):
            pre, so, lo = sq.at(sHR[k // 9], (2 * (k % 9) + tt) * 1024)
            hl.append((pre + [I(f"buffer_load_dwordx4 {HBk(k, tt)}, v1, {WS}, {so} offen{off(lo)} sc1")],
                       f2c + 2 if k < 18 else 18 * (k - 8) if k < 27 else 164, (18 * k if k < 28 else 504 + 2 * (k - 28)) - lat, vc))
    ch.append(hl)
    sq = Seq(tC_); gl = []
    gdl = bar[ob] - 26 - lat
    for q in range(12):
        pre, so, lo = sq.at(tB, q * 1024) if q < 8 else sq.at(tD, (q - 8) * 1024)
        gl.append((pre + [I(f"buffer_load_dwordx4 {vr(104 + 4 * q)}, {'v1' if q < 8 else 'v23'}, {WS}, {so} offen{off(lo)} sc1")], f3c + 2, gdl - vc * (11 - q), vc))
    od = []
    for d in range(9):
        pre, so, lo = sq.at(tB, d * 1024) if d else ([], tB, 0)
        if not d: sq.cur = None
        od.append((pre + [I(f"buffer_load_dwordx4 v1, {WS}, {so} offen{off(lo)} sc1 lds", m0=(sLW, S3 + d * 1024 - lo))], max(f4c + 2, bar[ob + 1] + 2), 600, vc))
    for d in range(5):
        pre = [I(f"s_add_u32 {tD}, {tD}, 9216")] if d else []
        od.append((pre + [I(f"buffer_load_dwordx4 v1, {WS}, {tD} offen sc1 lds", m0=("s99", SLOT + 1024 * d))], bar[20] + dstart, 600, vc))
    ch.append(gl + od)
    od = [x[0][-1] for x in od]
    ch.append([(f"buffer_load_dwordx4 {vr(104)}, v21, {X}, {sOUT} offen", bar[ob + 1] + 20, 620, 2 * vc),
               (f"buffer_load_dwordx4 {vr(108)}, v21, {X}, {sOUT2} offen", 0, 620, 2 * vc), (f"buffer_load_dwordx2 {vr(112, 2)}, v22, {X}, {sOUT8} offen", 0, 620, vc)])
    pr, ph, pg, px = SB.edf(ch)
    if opt.get("verbose", 1): print("ring", pr, "\nh", ph, "\ngather/o", pg, "x", px)
    pg = pg[:12]
    def val(h, i): return (i & 3) == h or i in (4 * h + 2, 4 * h + 3)
    adr = [f"s_lshl2_add_u32 {tB}, {sJ}, {sW}", f"s_lshl_b32 {tD}, {tB}, 6", f"s_add_u32 s44, {tD}, {F3}", f"s_lshl2_add_u32 {sF}, {sM}, s44",
           f"s_lshl_b32 {tD}, {tB}, 12", f"s_lshl_b32 {tB}, {tB}, 13", f"s_add_u32 {tB}, {tB}, {KV1}", f"s_add_u32 {tD}, {tD}, {KVC}",
           f"v_and_b32 v16, 15, v0", f"v_lshrrev_b32 v29, 4, v0",
           f"s_mov_b32 s40, 28", f"s_cmp_eq_u32 {sW}, 1", "s_cmov_b32 s40, 18", f"s_cmp_eq_u32 {sW}, 3", "s_cmov_b32 s40, 12",
           f"v_and_b32 v28, 31, v0", f"v_cmp_gt_u32 vcc, s40, v28", f"v_cndmask_b32 v23, {OOB}, v1, vcc",
           f"v_lshlrev_b32 v28, 3, v28", f"v_lshrrev_b32 v30, 5, v0", f"v_lshl_add_u32 v28, v30, 2, v28",
           f"s_lshl_b32 s40, {sW}, 8", f"s_add_u32 s40, s40, {CB}", f"v_add_u32 v17, s40, v28",
           f"s_lshl_b32 s40, {sW}, 5", f"v_add_u32 v28, s40, v16", f"v_mul_u32_u24 v28, 296, v28", f"v_add_u32 v28, {S3}, v28",
           f"v_lshl_add_u32 v13, v29, 4, v28", f"v_and_b32 v30, 1, v29", f"v_mul_u32_u24 v30, 72, v30", f"v_add3_u32 v14, v28, v30, 64",
           f"v_and_b32 v28, 3, v0", f"v_subrev_u32 v28, 1, v28", f"v_max_i32 v28, 0, v28", f"v_mad_u32_u24 v28, v29, 3, v28",
           f"v_lshlrev_b32 v28, 3, v28", f"v_add_u32 v28, {CB}, v28", f"v_mov_b32 v30, {CB + 31 * 8}",
           setmask("s[40:41]", lanemask(lambda l: val(0, l & 15))), f"v_cndmask_b32 v8, v30, v28, s[40:41]",
           setmask("s[42:43]", lanemask(lambda l: val(1, l & 15))), f"v_cndmask_b32 v9, v30, v28, s[42:43]",
           f"v_add_u32 v28, 96, v28",
           setmask("s[40:41]", lanemask(lambda l: l < 32 and val(l >> 4, l & 15))), f"v_cndmask_b32 v12, v30, v28, s[40:41]",
           f"v_lshlrev_b32 v28, 3, v16", f"v_add_u32 v28, {CB + 96}, v28",
           setmask("s[42:43]", 0xffff), f"v_cndmask_b32 v10, v30, v28, s[42:43]",
           setmask("s[40:41]", 0xffff0000), f"v_cndmask_b32 v11, v30, v28, s[40:41]",
           f"s_bfe_u32 s40, {sJ}, 0x20001", f"s_lshl_b32 s40, s40, 8", f"s_and_b32 s41, {sJ}, 1", f"s_lshl3_add_u32 s40, s41, s40",
           f"v_lshlrev_b32 v28, 4, v16", f"v_lshl_add_u32 v28, v29, 2, v28", f"v_add_u32 v28, s40, v28", f"v_cmp_gt_u32 vcc, 32, v0",
           f"v_cndmask_b32 v15, {OOB}, v28, vcc",
           f"s_and_b32 s41, {sW}, 1", f"s_mul_i32 s41, s41, 18432", f"s_add_u32 s40, s41, {S3}", f"v_add_u32 v19, s40, v1",
           f"s_sub_u32 s40, {S3 + 18432}, s41", f"v_add_u32 v20, s40, v1",
           f"v_mul_u32_u24 v28, 1152, v16", f"v_lshl_add_u32 v21, v29, 4, v28", f"v_lshl_add_u32 v22, v29, 3, v28",
           f"s_cmp_lt_u32 {sW}, 2", f"s_cselect_b32 s40, 0, {OOB}", f"v_add_u32 v22, s40, v22",
           f"s_lshl2_add_u32 s40, {sM}, {sC}", f"s_mul_i32 s40, s40, {32 * 1152}", f"s_mul_i32 s42, {sN}, 288", f"s_add_u32 s40, s40, s42",
           f"s_add_u32 s43, s40, s41", f"s_add_u32 {sOUT8}, s43, 256", f"s_lshl_b32 s42, {sW}, 6", f"s_add_u32 {sOUT}, s43, s42",
           f"s_sub_u32 s40, s40, s41", f"s_add_u32 s40, s40, s42", f"s_add_u32 {sOUT2}, s40, 18432",
           f"s_lshr_b32 s40, {sW}, 1", f"s_lshl_b32 s40, s40, 10", f"s_and_b32 s41, {sW}, 1", f"s_lshl3_add_u32 s40, s41, s40",
           f"s_add_u32 s40, s40, {FA}", f"v_lshlrev_b32 v24, 2, v16", f"v_add_u32 v16, s40, v1", f"v_add_u32 v18, {FA}, v1"]
    adr = atomize(adr)
    SB.fill(adr[:4], 1, 8)
    pos = SB.fill(adr[4:], 8, opt.get("adr1", 90))
    SB.after(f3s, need(kvs)); SB.vm(signal([]), f3s, 2, force=True)
    fl = f"buffer_load_dword v31, v24, {WS}, s44 offen sc1"
    assert pos[-1] < f3l and f2c < f3l
    SB.vm(fl, f3l, 2, force=True)
    SB.after(f3c, check(fl, CMPF, 3))
    p = max(pg[-1] + lat, bar[ob] - 26)
    SELS = ar(250)
    for q in range(12):
        d = vr(248) if q < 8 else vr(252)
        SB.after(p + q // 2, mf(d, SELS, vr(104 + 4 * q), d if q & 7 else 0))
    faw = [I("ds_write_b64 v16, v[248:249]"), I("ds_write_b32 v17, v252")]
    ad = ["v_cvt_pk_bf16_f32 v248, v248, v249", "v_cvt_pk_bf16_f32 v249, v250, v251", faw[0],
          "v_permlane32_swap_b32 v252, v254", "v_permlane32_swap_b32 v253, v255",
          "v_add_f32 v252, v252, v254", "v_add_f32 v253, v253, v255", "v_cvt_pk_bf16_f32 v252, v252, v253", faw[1]]
    q = SB.fill(ad, p + 8, p + 24)[-1]
    assert q < bar[ob], (q, bar[ob])
    bn[ob].deps += faw
    o1 = [f"ds_read_b128 {vr(104)}, v18", f"ds_read_b128 {vr(108)}, v18 offset:1024",
          f"ds_read_b64 {vr(112, 2)}, v8", f"ds_read_b64 {vr(114, 2)}, v8 offset:256",
          f"ds_read_b64 {vr(116, 2)}, v9 offset:512", f"ds_read_b64 {vr(118, 2)}, v9 offset:768",
          f"ds_read_b64 {vr(120, 2)}, v10", f"ds_read_b64 {vr(122, 2)}, v11 offset:512", f"ds_read_b64 {vr(124, 2)}, v12 offset:256"]
    o2, o3, ost = [], [], []
    m16 = lambda d, a, b: f"v_mfma_f32_16x16x16_bf16 {vr(d)}, {vr(a, 2)}, {vr(b, 2)}, {vr(d)}"
    for tt in range(2):
        b = 128 + 10 * tt; t = 152 + 12 * tt
        o1 += [f"ds_read_b64 {vr(b + 2 * q, 2)}, v13{off((0, 8, 72, 80)[q] + 4736 * tt)}" for q in range(4)]
        o1 += [f"ds_read_b64 {vr(b + 8, 2)}, v14{off(4736 * tt)}"]
        o2.append([mf(vr(t + 8), vr(112), vr(b), 0), mf(vr(t), vr(104), vr(b), 0), mf(vr(t + 4), vr(108), vr(b + 4), 0),
                   mf(vr(t + 8), vr(116), vr(b + 4), vr(t + 8)), m16(t, 120, b + 8), m16(t + 4, 122, b + 8), m16(t + 8, 124, b + 8)])
        ost.append([I(f"buffer_store_dwordx4 {vr(t)}, v1, {WS}, s{42 + tt} offen sc1"), I(f"buffer_store_dword v{t + 10}, v15, {WS}, s{44 + tt} offen sc1")])
        L = [f"v_add_f32 v{t + 8}, 0x358637bd, v{t + 8}", f"v_add_f32 v{t + 9}, 0x358637bd, v{t + 9}",
             f"v_rcp_f32 v{t + 8}, v{t + 8}", f"v_rcp_f32 v{t + 9}, v{t + 9}"]
        L += [f"v_mul_f32 v{t + r}, v{t + 8 + (r >> 2)}, v{t + r}" for r in range(8)]
        L += [f"v_cndmask_b32 v{t + 8}, v{t + 9}, v{t + 8}, s[40:41]"]
        L += [f"v_cvt_pk_bf16_f32 v{t + q}, v{t + 2 * q}, v{t + 2 * q + 1}" for q in range(4)]
        L += [f"v_mul_f32 v{t + 10}, v{t + 8}, v{t + 10}", f"v_mul_f32 v{t + 11}, v{t + 8}, v{t + 11}", f"v_cvt_pk_bf16_f32 v{t + 10}, v{t + 10}, v{t + 11}"]
        o3.append(L)
    o0 = [f"s_lshl2_add_u32 s40, {sM}, {sW}", f"s_lshl_b32 {sF}, s40, 6", f"s_lshl2_add_u32 {sF}, {sJ}, {sF}", f"s_add_u32 {sF}, {sF}, {F4}",
          f"s_mul_i32 s40, s40, {SLOT}", f"s_add_u32 s40, s40, {OB}",
          f"s_lshr_b32 s44, {sJ}, 3", f"s_add_u32 s44, s44, 16", f"s_lshl_b32 s44, s44, 10", f"s_add_u32 s44, s44, s40", f"s_add_u32 s45, s44, 18432",
          f"s_lshl_b32 s42, {sJ}, 10", f"s_add_u32 s42, s42, s40", f"s_add_u32 s43, s42, 18432", "s_mov_b64 s[40:41], 0xffff",
          f"s_lshl2_add_u32 {tB}, {sM}, {sC}", f"s_lshl_b32 {sFP}, {tB}, 6", f"s_add_u32 {sFP}, {sFP}, {F4}",
          f"s_mul_i32 {tB}, {tB}, {SLOT}", f"s_add_u32 {tB}, {tB}, {OB}", f"s_add_u32 {tB}, {tB}, {sLW}",
          f"s_mul_i32 {tD}, {sW}, 46080", f"s_add_u32 {tD}, {tD}, {sWO}", f"s_add_u32 {tD}, {tD}, 8192", f"s_mul_i32 s99, {sW}, 5120"]
    SB.fill(o0, pg[-1] + 2, bar[ob])
    p = bar[ob]
    q = SB.fill(o1, p + 1, p + 22)[-1]
    SB.spread([x for pair in zip(o2[0], o2[1]) for x in pair], q + 3, q + 11)
    pos = SB.fill(o3[0] + o3[1], q + 13, q + opt.get("o3len", 48))
    n3 = len(o3[0])
    for z in range(4): q = SB.vm(ost[z >> 1][z & 1], pos[n3 * (z // 2 + 1) - 1] + 1 + 2 * (z & 1), 1, force=True)
    assert q < bar[ob + 1] + 20
    f4s = q + opt.get("f4s", 44)
    SB.after(f4s, need(ost[0], ost[1])); SB.vm(signal([]), f4s, 2, force=True)
    fl = f"buffer_load_dword v31, v24, {WS}, {sFP} offen sc1"
    SB.vm(fl, f4c - opt.get("f4l", 24), 2, force=True)
    SB.after(f4c, check(fl, CMPF, 4))
    misc = [f"s_lshl_b32 s40, {sC}, 7", f"s_and_b32 s41, {sW}, 1", f"s_lshl_b32 s42, s41, 6", f"s_add_u32 s40, s40, s42", f"s_add_u32 s40, s40, {RSH}",
            f"v_add_u32 v23, s40, v24", "v_xor_b32 v25, 64, v23", "ds_read_b32 v114, v23", "ds_read_b32 v115, v25",
            "v_accvgpr_read_b32 v28, a250", "v_accvgpr_read_b32 v29, a251", f"s_cmp_eq_u32 s41, 0", "s_cselect_b64 s[42:43], -1, 0",
            "v_cndmask_b32 v118, 0, v28, s[42:43]", "v_cndmask_b32 v119, 0, v29, s[42:43]",
            "v_cndmask_b32 v120, v28, 0, s[42:43]", "v_cndmask_b32 v121, v29, 0, s[42:43]",
            "v_mov_b32 v122, v118", "v_mov_b32 v123, v119",
            f"v_mul_f32 v116, 0xbfb8aa3b, v114", f"v_mul_f32 v117, 0xbfb8aa3b, v115",
            f"s_lshl2_add_u32 s40, {sM}, {sN}", f"s_lshl2_add_u32 s41, s40, {sW}", f"s_lshl2_add_u32 s40, s40, {sC}",
            f"s_lshl2_add_u32 s44, s41, {sC}", f"s_mul_i32 s44, s44, 9216", f"s_add_u32 s44, s44, {PART}",
            f"s_mul_i32 s45, s40, {SLOT}", f"s_add_u32 s45, s45, {PART}",
            f"s_lshl_b32 s41, s41, 7", f"s_lshl2_add_u32 s41, {sC}, s41", f"s_add_u32 {sF}, s41, {F5}",
            f"s_lshl_b32 s40, s40, 7", f"s_add_u32 s43, s40, {F5}"]
    q = SB.fill(atomize(misc), f4s + 3, bar[20])[-1]
    pst = []; late = []
    sq = Seq(tA)
    for T in range(9):
        b = 32 + 8 * T
        its = [f"v_cvt_pk_bf16_f32 v{b + q}, v{b + 2 * q}, v{b + 2 * q + 1}" for q in range(4)]
        pre, so, lo = sq.at("s44", T * 1024)
        s_ = I(f"buffer_store_dwordx4 {vr(b)}, v1, {WS}, {so} offen{off(lo)} sc1"); pst.append(s_)
        if T < 8:
            q = SB.fill(its, done[T] + 3, done[T] + 9)[-1]
            SB.vm(pre + [s_], max(q + 1, f4c + 1), vc, force=True)
        else: late.append(its + pre + [s_])
    if opt.get("verbose", 1): print("f4s", f4s, "f4c", f4c, "spill", len(SB.spill))
    assert not SB.spill
    SB.emit(P)
    for x in late: A(x)
    A(stamp("B_end"))
    A(need(od))
    A("s_barrier")

    ST = Stream()
    NBK = 4
    for k in range(18):
        r = 12 * (k % NBK)
        for z in range(2):
            for x in range(2):
                d = 176 + 8 * z + 4 * x
                ST.mfma(mf(vr(d), ar(104 + 72 * x + 4 * k), ar(r + 4 * z), vr(d) if k else 0))
        ST.mfma(mf(vr(192), ar(r + 8), ar(r), vr(192) if k else 0))
    for k in range(18):
        r = 12 * (k % NBK); pos = 5 * (k - (NBK - 1))
        rs = [f"ds_read_b128 {ar(r)}, v19{off(k * 1024)}", f"ds_read_b128 {ar(r + 4)}, v20{off(k * 1024)}", f"ds_read_b128 {ar(r + 8)}, v1{off(SLOT + k * 1024)}"]
        for q, t in enumerate(rs): ST.after(pos + q if pos >= 0 else -1, t)
    ST.after(opt.get("f5sig", 30), need(pst), f"buffer_store_dword v7, v27, {WS}, {sF} offen sc1")
    fl = f"buffer_load_dword v31, v26, {WS}, s43 offen sc1"
    ST.after(opt.get("f5ld", 80), fl)
    ST.emit(P)
    A(stamp("s_end"))
    A(check(fl, CMPF, 5))
    A(f"s_lshl_b32 {tA}, {sW}, 11\n s_add_u32 {tA}, {tA}, s45")
    for cp in range(4):
        A(f"s_add_u32 {tB}, {tA}, {cp * 9216}\n s_add_u32 {tC_}, s45, {cp * 9216 + 8192}")
        for x in range(2): A(f"buffer_load_dwordx4 {vr(32 + 12 * cp + 4 * x)}, v1, {WS}, {tB} offen{off(1024 * x)} sc1")
        A(f"buffer_load_dwordx4 {vr(40 + 12 * cp)}, v1, {WS}, {tC_} offen sc1")
    for cp in range(4):
        for z in range(2):
            for x in range(2):
                d = 200 + 8 * z + 4 * x
                A(mf(vr(d), vr(118 + 2 * z), vr(32 + 12 * cp + 4 * x), vr(d) if cp else 0))
        A(mf(vr(216), vr(118), vr(40 + 12 * cp), vr(216) if cp else 0))
    A(stamp("sum"))

    def gate(F, Sa, XR, n, rs, tmp):
        for e in range(n): A(f"v_mul_f32 v{tmp + e}, v{rs + 2}, v{F + e}")
        for e in range(n): A(f"v_exp_f32 v{tmp + e}, v{tmp + e}")
        for e in range(n): A(f"v_mul_f32 v{F + e}, v{rs}, v{F + e}")
        for e in range(n): A(f"v_add_f32 v{tmp + e}, 1.0, v{tmp + e}")
        for e in range(n): A(f"v_rcp_f32 v{tmp + e}, v{tmp + e}")
        for e in range(n): A(f"v_mul_f32 v{F + e}, v{Sa + e}, v{F + e}")
        for e in range(n):
            A(f"v_lshlrev_b32 v{Sa + e}, 16, v{XR + e // 2}" if e % 2 == 0 else f"v_and_b32 v{Sa + e}, 0xffff0000, v{XR + e // 2}")
        for e in range(n): A(f"v_fma_f32 v{F + e}, v{F + e}, v{tmp + e}, v{Sa + e}")
        for q in range(n // 2): A(f"v_cvt_pk_bf16_f32 v{XR + q}, v{F + 2 * q}, v{F + 2 * q + 1}")
    gate(200, 176, 104, 8, 114, 80)
    oc = ["", " sc1", " nt", " sc0 sc1", " sc1 nt"][opt.get("oc", 1)]
    A(f"buffer_store_dwordx4 {vr(104)}, v21, {OUT}, {sOUT} offen{oc}")
    gate(208, 184, 108, 8, 115, 88)
    A(f"buffer_store_dwordx4 {vr(108)}, v21, {OUT}, {sOUT2} offen{oc}")
    gate(216, 192, 112, 4, 114, 96)
    A(f"buffer_store_dwordx2 {vr(112, 2)}, v22, {OUT}, {sOUT8} offen{oc}")
    if opt.get("stamps"):
        A(stamp("end"))
        for k in range(len(stamps)): A(f"v_writelane_b32 v255, s{SREG[k]}, {k}")
        A(f"""s_lshl_b32 s40, s2, 2
              s_add_u32 s40, s40, {sW}
              s_lshl_b32 s40, s40, 8
              s_add_u32 s40, s40, {STAMP}
              v_lshlrev_b32 v0, 2, v0
              buffer_store_dword v255, v0, {WS}, s40 offen""")
    A("L_end:")
    return finalize(P, verbose=opt.get("verbose", True)), stamps


HEAD = open(os.path.join(os.path.dirname(os.path.abspath(__file__)), "..", "cdna_kernels", KN + ".s.ref")).read().split("; Override launch")[0]


def wrap(body):
    return f"""{HEAD}; One launch, 256 workgroups (one per CU); hand-offs between workgroups go through d_ws.
; @launch grid=(256,1,1) block=(256,1,1) lds=163840
.amdgcn_target "amdgcn-amd-amdhsa--gfx950"
.text
.globl {KN}_kernel
.p2align 8
.type {KN}_kernel,@function
{KN}_kernel:
{body}
s_endpgm
.section .rodata,"a"
.p2align 6
.amdhsa_kernel {KN}_kernel
  .amdhsa_next_free_vgpr 512
  .amdhsa_next_free_sgpr 102
  .amdhsa_accum_offset 256
  .amdhsa_group_segment_fixed_size 0
  .amdhsa_kernarg_size 80
  .amdhsa_user_sgpr_count 2
  .amdhsa_user_sgpr_kernarg_segment_ptr 1
  .amdhsa_system_sgpr_workgroup_id_x 1
.end_amdhsa_kernel
"""


if __name__ == "__main__":
    import json
    out = sys.argv[1]
    opt = {}
    for a in sys.argv[2:]:
        k, v = a.split("="); opt[k] = int(v)
    body, stamps = build(opt)
    open(out, "w").write(wrap(body))
    json.dump(stamps, open(out + ".json", "w"))
```
